```python
import torch

def _softmax(x, axis=-1):
    return torch.softmax(x, dim=axis)
def _gelu(x):
    return torch.nn.functional.gelu(x, approximate="tanh")
def _silu(x):
    return torch.nn.functional.silu(x)
def _sigmoid(x):
    return torch.sigmoid(x)
def _layernorm(x, axis=-1, eps=1e-5):
    m = x.mean(dim=axis, keepdim=True)
    v = x.var(dim=axis, keepdim=True, unbiased=False)
    return (x - m) / torch.sqrt(v + eps)
def _scatter_add(tgt, idx, src, axis=0):
    return tgt.clone().index_add_(axis, idx, src)
def _segment_sum(src, seg, n):
    out = torch.zeros((n,) + src.shape[1:], dtype=src.dtype)
    return out.index_add_(0, seg, src)
def _pad(x, pw):
    flat = tuple(v for pair in reversed(pw) for v in pair)
    return torch.nn.functional.pad(x, flat)

kernel_name = 'concat_heads__compressed_kv_cla__ssm_conv_h3__prompt'

def setup_inputs():

    _w = (lambda a: (lambda t: t.to(torch.bfloat16) if t.is_floating_point() else t)(torch.as_tensor(a)))
    def _A_setup():
        B, H, Sq, Sk, D, M = 1, 16, 2048, 2048, 256, 448
        Dc = 4 * D
        return {
            "x": _w((lambda *s: torch.randn(*s, dtype=torch.bfloat16) * 3.2)(B, Sq, M)),
            "c_kv": _w((lambda *s: torch.randn(*s, dtype=torch.bfloat16) * 0.05)(B, Sk, Dc)),
            "w_q": _w((lambda *s: torch.randn(*s, dtype=torch.bfloat16) * 3.2)(M, H, D) * (M ** -0.5)),
            "w_uk": _w((lambda *s: torch.randn(*s, dtype=torch.bfloat16) * 3.2)(Dc, H, D) * (Dc ** -0.5)),
            "w_uv": _w((lambda *s: torch.randn(*s, dtype=torch.bfloat16) * 0.05)(Dc, H, D) * (Dc ** -0.5)),
            "w_o": _w((lambda *s: torch.randn(*s, dtype=torch.bfloat16) * 0.05)(H, D, M) * ((H * D) ** -0.5)),
        }
    _A_in = _A_setup()

    def _B_setup():
        B, S, D = 1, 2048, 448
        ks = 4
        return {
            "q": _w((lambda *s: torch.randn(*s, dtype=torch.bfloat16) * 0.05)(B, S, D)),
            "k": _w((lambda *s: torch.randn(*s, dtype=torch.bfloat16) * 0.1)(B, S, D)),
            "v": _w((lambda *s: torch.randn(*s, dtype=torch.bfloat16) * 0.1)(B, S, D)),
            "shift_k": _w((lambda *s: torch.randn(*s, dtype=torch.bfloat16) * 0.1)(D, ks) * 0.5),
            "ssm_k": _w((lambda *s: torch.randn(*s, dtype=torch.bfloat16) * 0.1)(D, S) * (1.0 / S ** 0.5)),
            "ssm_D": _w((lambda *s: torch.randn(*s, dtype=torch.bfloat16) * 0.1)(D)),
        }
    _B_in = _B_setup()

    return {
        "A_x": _A_in["x"],
        "A_c_kv": _A_in["c_kv"],
        "A_w_q": _A_in["w_q"],
        "A_w_uk": _A_in["w_uk"],
        "A_w_uv": _A_in["w_uv"],
        "A_w_o": _A_in["w_o"],
        "B_q": _B_in["q"],
        "B_k": _B_in["k"],
        "B_v": _B_in["v"],
        "B_shift_k": _B_in["shift_k"],
        "B_ssm_k": _B_in["ssm_k"],
        "B_ssm_D": _B_in["ssm_D"],
    }

def reference(A_x, A_c_kv, A_w_q, A_w_uk, A_w_uv, A_w_o, B_q, B_k, B_v, B_shift_k, B_ssm_k, B_ssm_D):
    def _A_ref(x, c_kv, w_q, w_uk, w_uv, w_o):
        B, Sq, M = x.shape[0], x.shape[1], x.shape[2]
        Sk = c_kv.shape[1]
        H, D = w_q.shape[1], w_q.shape[2]
        q = torch.einsum("bqm,mhd->bhqd", x, w_q)
        k = torch.einsum("bkc,chd->bhkd", c_kv, w_uk)
        v = torch.einsum("bkc,chd->bhkd", c_kv, w_uv)
        scores = torch.einsum("bhqd,bhkd->bhqk", q, k) * (D ** -0.5)
        off = Sk - Sq
        qi = torch.arange(Sq)[:, None]
        kj = torch.arange(Sk)[None, :]
        cmask = kj <= (qi + off)
        scores = torch.where(cmask[None, None], scores, -1e9)
        p = _softmax(scores, axis=-1)
        ctx = torch.einsum("bhqk,bhkd->bhqd", p, v)
        return torch.einsum("bhqd,hdm->bqm", ctx, w_o)

    def _B_ref(q, k, v, shift_k, ssm_k, ssm_D):
        B, S, D = q.shape
        ks = shift_k.shape[-1]
        k_pad = _pad(k, ((0, 0), (ks - 1, 0), (0, 0)))
        k_shift = torch.zeros_like(k)
        for t in range(ks):
            k_shift = k_shift + k_pad[:, t:t + S, :] * shift_k[:, ks - 1 - t][None, None, :]
        kv = k_shift * v
        L = 2 * S
        kv_pad = _pad(kv, ((0, 0), (0, S), (0, 0)))
        kf_pad = _pad(ssm_k, ((0, 0), (0, S)))
        kv_f = (lambda x, axes=(-2,-1): torch.fft.rfft2(x.float(), dim=axes))(kv_pad[:, None, :, :], axes=(1, 2))
        kf_f = (lambda x, axes=(-2,-1): torch.fft.rfft2(x.float(), dim=axes))(kf_pad[:, None, :], axes=(1, 2))
        kf_f = (lambda x, *d: x.permute(*d))(kf_f, 1, 2, 0)
        y_f = kv_f * kf_f[None, :, :, :]
        y = (lambda x, s, axes=(-2,-1): torch.fft.irfft2(x, s=s, dim=axes).to(torch.bfloat16))(y_f, (1, L), axes=(1, 2))[:, 0, :S, :]
        y = y + kv * ssm_D[None, None, :]
        return q * y

    a = _A_ref(A_x, A_c_kv, A_w_q, A_w_uk, A_w_uv, A_w_o)
    b = _B_ref(B_q, B_k, B_v, B_shift_k, B_ssm_k, B_ssm_D)
    return torch.concatenate([a, b], axis=-1)
```

```python
class Asm:
    def __init__(self):
        self.L = []
        self.vm = []
    def __call__(self, s):
        for ln in s.split("\n"):
            ln = ln.strip()
            if ln: self.L.append(ln)
    def label(self, n): self.L.append(n + ":")
    def text(self): return "\n".join(self.L) + "\n"

def vr(b, n): return f"v[{b}:{b+n-1}]"
def ar(b, n): return f"a[{b}:{b+n-1}]"
def sr(b, n): return f"s[{b}:{b+n-1}]"

def interleave(mfmas, fillers, start=0, per_gap=None, end_gap=None):
    n = len(mfmas)
    if end_gap is None: end_gap = n
    gaps = [[] for _ in range(n)]
    ng = end_gap - start
    nf = len(fillers)
    if per_gap is not None:
        g = start; c = 0
        for f in fillers:
            if c >= per_gap and g < n - 1:
                g += 1; c = 0
            gaps[g].append(f); c += 1
    else:
        for i, f in enumerate(fillers):
            g = start + (i * ng) // max(nf, 1)
            gaps[g].append(f)
    out = []
    for m, g in zip(mfmas, gaps):
        out.append(m)
        for f in g:
            if isinstance(f, (list, tuple)): out.extend(f)
            else: out.append(f)
    return out

def kernel_header(name):
    return f""".globl {name}
.p2align 8
.type {name},@function
{name}:
"""

def kernel_desc(name, vgpr, sgpr, accum):
    return f""".amdhsa_kernel {name}
  .amdhsa_next_free_vgpr {vgpr}
  .amdhsa_next_free_sgpr {sgpr}
  .amdhsa_accum_offset {accum}
  .amdhsa_group_segment_fixed_size 0
  .amdhsa_kernarg_size 120
  .amdhsa_user_sgpr_count 2
  .amdhsa_user_sgpr_kernarg_segment_ptr 1
  .amdhsa_system_sgpr_workgroup_id_x 1
.end_amdhsa_kernel
"""

def srd(A, d, lo, hi, nbytes):
    A(f"s_mov_b32 s{d}, {lo}")
    A(f"s_and_b32 s{d+1}, {hi}, 0xffff")
    A(f"s_mov_b32 s{d+2}, {nbytes}")
    A(f"s_mov_b32 s{d+3}, 0x20000")

WS_Q = 0
WS_K = 16 << 20
WS_V = 32 << 20
WS_CTX = 48 << 20
WS_PART = 64 << 20
WS_FLAG = 96 << 20
WS_KVT = 100 << 20
WS_QT = 104 << 20
WS_OT = 108 << 20
WS_BYTES = 268435456

import os
PROF = int(os.environ.get("PROF", "0"))
WS_PROF = 200 << 20
def stamp(A, idx, sbase=80):
    if not PROF: return
    A(f"s_memtime {sr(sbase+4*idx,2)}")
    A(f"s_memrealtime {sr(sbase+4*idx+2,2)}")
    A("s_waitcnt lgkmcnt(0)")
def stamp_flush(A, n, srd_ws, kidx, sbase=80, vt=250):
    if not PROF: return
    A(f"v_lshrrev_b32 v{vt}, 6, v0")
    A(f"v_lshlrev_b32 v{vt}, 6, v{vt}")
    A(f"s_lshl_b32 s{sbase-1}, s2, 8")
    A(f"s_add_u32 s{sbase-1}, s{sbase-1}, {WS_PROF + kidx*(1<<20)}")
    for i in range(n):
        A(f"v_mov_b32 v{vt+2}, s{sbase+4*i}")
        A(f"v_mov_b32 v{vt+3}, s{sbase+4*i+2}")
        A(f"buffer_store_dwordx2 v[{vt+2}:{vt+3}], v{vt}, {sr(srd_ws,4)}, s{sbase-1} offen offset:{8*i}")
        A("s_nop 1")
```

```python
from asmlib import *
import k0, struct

NAME = "f12_kernel"
LDS = 163840
UNIT = 16384
SLOT = 32768
OOB = 0x40000000

SRD_WS, SRD_DBG = 4, 8
sW, sX, sLI, sHD, sMT, sISV, sXCC, sFAST = 12, 13, 14, 15, 16, 17, 18, 19
sI, sTYPE = sMT, sISV
sT0, sT1, sT2, sT3, sT4, sT5 = 22, 23, 24, 25, 26, 27
SRD_C, SRD_W, SRD_X, SRD_WQ = 28, 32, 36, 40
SRD_BQ, SRD_BK, SRD_BV, SRD_BSK, SRD_BWS = 44, 48, 52, 56, 60
sOWLO, sOC, sOWHI, sDST, sSOFFC, sSOFFW, sW4096, sCNT = 64, 65, 66, 67, 68, 69, 70, 71
sSOFFX, sSOFFWQ, sOUT, sQPOS, sXB, sWQB, sDX, sDW = 72, 73, 74, 75, 76, 77, 78, 79
sBT = 80
sN1, sNT, sKOFF, sKBASE, sKPOS, sVOFF, sVBASE, sVPOS = 52, 53, 54, 55, 56, 57, 58, 59
sADST, sRD, sW8192, sJ1, sC, sPART, sCTX, sFLUSH = 60, 61, 62, 63, 64, 65, 66, 67
sTHR, sPRE, sQL, sREG2, sPF, sGOT, sCPT, sCPO, sCPI, sKEND = 68, 69, 71, 72, 73, 74, 75, 76, 77, 78
sCR, sTRK = 82, 83
sFL2 = 3
sFL = 20
sPOS = 21
NT = 17
PNAMES = os.environ.get("PNAMES", "start,kv0,chk,s1,tail,pv,end").split(",")
def pst(A, name):
    if not PROF or name not in PNAMES: return
    idx = PNAMES.index(name)
    A("s_memtime s[98:99]"); A("s_memrealtime s[100:101]"); A("s_waitcnt lgkmcnt(0)")
    A(f"s_mov_b32 s{84+2*idx}, s98"); A(f"s_mov_b32 s{85+2*idx}, s100")
def pstamp(A, idx):
    pst(A, ["start","kv0","chk","s1","tail","pv","end"][idx])
def pflush(A, n, kidx, vt=16):
    if not PROF: return
    A(f"v_lshrrev_b32 v{vt}, 6, v0"); A(f"v_lshlrev_b32 v{vt}, 6, v{vt}")
    A("s_lshl_b32 s98, s2, 8"); A(f"s_add_u32 s98, s98, {WS_PROF + kidx*(1<<20)}")
    for i in range(n):
        A(f"v_mov_b32 v{vt+2}, s{84+2*i}"); A(f"v_mov_b32 v{vt+3}, s{85+2*i}")
        A(f"buffer_store_dwordx2 v[{vt+2}:{vt+3}], v{vt}, {sr(SRD_WS,4)}, s98 offen offset:{8*i}")
        A("s_nop 1")

vOFFC, vOFFW, vOFFX = 1, 5, 9
vBC, vBWQ = 13, 17
vCA, vWLO, vWHI = 19, 21, 22
vGM = 24
vZ = 23
FR16 = [(32, 64), (96, 128)]
vOFFW16, vBC16, vBW16, vST16 = 232, 236, 238, 239
vB1 = 160
vQACC = 96
vTMP = 224
vWR, NWR = 32, 12
vXF = 80
vQA = 88
QLA = 6

def wrap_add(reg, inc, t):
    return [f"s_add_u32 s{t}, s{reg}, {inc}", f"s_sub_u32 s{reg}, s{t}, {LDS}", f"s_cselect_b32 s{reg}, s{t}, s{reg}"]

QNT = os.environ.get('QNT', '')
KVST = os.environ.get('KVST', ' sc1')
PST = os.environ.get('PST', ' sc1')
KNT = os.environ.get('KNT', '')
def dma_unit(srd_, voff, soff_reg, soff_inc):
    fl = QNT if srd_ in (SRD_X, SRD_WQ) else KNT
    g = [[f"s_add_u32 m0, s{sDST}, s{sW4096}"] + wrap_add(sDST, UNIT, sT0)]
    for j in range(4):
        o = f" offset:{j*1024}" if j else ""
        g.append(f"buffer_load_dwordx4 v{voff+j}, {sr(srd_,4)}, s{soff_reg} offen{o}{fl} lds")
    if soff_inc > 0: g.append(f"s_add_u32 s{soff_reg}, s{soff_reg}, {soff_inc}")
    else: g.append(f"s_sub_u32 s{soff_reg}, s{soff_reg}, {-soff_inc}")
    return g

def flatten(gs):
    out = []
    for g in gs:
        if isinstance(g, (list, tuple)):
            i = 0
            while i < len(g):
                if (g[i].startswith("s_sub_u32") or g[i].startswith("s_cmp")) and i + 1 < len(g) and g[i+1].startswith("s_cselect"):
                    j = i + 1
                    while j < len(g) and g[j].startswith("s_cselect"): j += 1
                    out.append(list(g[i:j])); i = j
                elif (g[i].startswith("s_mov_b32") or g[i].startswith("s_add_u32")) and i + 1 < len(g) and g[i+1].startswith("buffer_store"):
                    out.append(list(g[i:i+2])); i += 2
                else:
                    out.append(g[i]); i += 1
        else: out.append(g)
    return out

def put(A, f):
    if isinstance(f, (list, tuple)):
        for x in f: A(x)
    else: A(f)
def flat(A, gs):
    for g in gs: put(A, g)

def kv_reads(setn, caddr, waddr):
    cb, wb = FR16[setn]
    r = []
    for t in range(8):
        r.append(f"ds_read_b128 {vr(cb+4*t,4)}, v{caddr} offset:{t*2048}")
        off = (t >> 2) * 4096 + (t & 3) * 256
        r.append(f"ds_read_b64_tr_b16 {vr(wb+4*t,2)}, v{waddr} offset:{off}")
        r.append(f"ds_read_b64_tr_b16 {vr(wb+4*t+2,2)}, v{waddr} offset:{off+1024}")
    return r

def kv_mfmas(setn, isv, fresh=False):
    cb, wb = FR16[setn]
    m = []
    for i in range(8):
        for j in range(8):
            acc = ar((i*8+j)*4, 4)
            W = vr(wb+4*i, 4); C = vr(cb+4*j, 4)
            c = "0" if fresh else acc
            if isv: m.append(f"v_mfma_f32_16x16x32_bf16 {acc}, {C}, {W}, {c}")
            else:   m.append(f"v_mfma_f32_16x16x32_bf16 {acc}, {W}, {C}, {c}")
    return m

def kv_stage(A, isv, dmas, last_reads, extra=None, last_late=False, wa=20, wb=16, fresh=False, ex0=None, ex1=None):
    def emit(mf, reads, other, ex, late=False):
        n = len(mf)
        gaps = [[] for _ in mf]
        other = flatten(other)
        r0 = n - 2*len(reads) if late else 0
        for i, f in enumerate(reads): gaps[min(r0 + 2*i, n-1)].append(f)
        for i, f in enumerate(other): gaps[2*((i * (n//2)) // max(len(other), 1)) + 1].append(f)
        for i, f in enumerate(ex): gaps[(i * n) // len(ex)].append(f)
        for m_, gl in zip(mf, gaps):
            A(m_)
            for f in gl: put(A, f)
    ex2 = [[], []]
    if extra:
        n = len(extra); ex2 = [extra[:n//2], extra[n//2:]]
    if ex0: ex2 = [ex0, []]
    if ex1: ex2 = [[], ex1]
    A("s_waitcnt lgkmcnt(0)"); A(f"s_waitcnt vmcnt({wa})"); A("s_barrier")
    f = kv_reads(1, vCA+1, vWHI)
    upd = [wrap_add(sOWLO, 4*UNIT, sT1), wrap_add(sOC, 4*UNIT, sT1), wrap_add(sOWHI, 4*UNIT, sT1)]
    upd += [f"v_add_u32 v{vCA+0}, s{sOC}, v{vBC16+0}", f"v_add_u32 v{vWLO}, s{sOWLO}, v{vBW16}"]
    upd2 = [f"v_add_u32 v{vCA+1}, s{sOC}, v{vBC16+1}", f"v_add_u32 v{vWHI}, s{sOWHI}, v{vBW16}"]
    emit(kv_mfmas(0, isv, fresh), f, dmas[0] + dmas[1] + upd, ex2[0])
    A("s_waitcnt lgkmcnt(0)"); A(f"s_waitcnt vmcnt({wb})"); A("s_barrier")
    emit(kv_mfmas(1, isv), last_reads, dmas[2] + dmas[3] + upd2, ex2[1], late=last_late)

def kv_epilogue_groups(isv):
    items = []
    for p in range(4):
        for o in range(8):
            if isv:
                a = 2*p; b = o
                t0 = (b*8+a)*4; t1 = (b*8+a+1)*4
                off = (b & 1)*128 + (b >> 1)*4096 + (p & 1)*2048 + (p >> 1)*32768
            else:
                b = 2*p; a = o
                t0 = (b*8+a)*4; t1 = ((b+1)*8+a)*4
                off = (a & 1)*128 + (a >> 1)*16384 + p*2048
            items.append((t0, t1, off))
    hi = [x for x in items if x[0] >= 128]; lo = [x for x in items if x[0] < 128]
    assert len(hi) == 16 and all(x[1] >= 128 for x in hi) and all(x[1] < 128 for x in lo)
    halves = []
    n = 0
    for part in (hi, lo):
        g = []
        for (t0, t1, off) in part:
            tb = vTMP
            ob = 240 + (n & 3)*4
            for r in range(4): g.append(f"v_accvgpr_read_b32 v{tb+r}, a{t0+r}")
            for r in range(4): g.append(f"v_accvgpr_read_b32 v{tb+4+r}, a{t1+r}")
            for r in range(4): g.append(f"v_cvt_pk_bf16_f32 v{ob+r}, v{tb+2*r}, v{tb+2*r+1}")
            g.append([f"s_add_u32 s{sT2}, s{sOUT}, {off & ~0xfff}",
                      f"buffer_store_dwordx4 {vr(ob,4)}, v{vST16}, {sr(SRD_WS,4)}, s{sT2} offen offset:{off & 0xfff}{KVST}"])
            n += 1
        halves.append(g)
    return halves


SRD_VS, sVOUT = 36, 79
def v_compact_groups():
    g = []
    for k in range(32):
        ob = 240 + (k & 3)*4
        for r in range(8): g.append(f"v_accvgpr_read_b32 v{vTMP+r}, a{8*k+r}")
        for r in range(4): g.append(f"v_cvt_pk_bf16_f32 v{ob+r}, v{vTMP+2*r}, v{vTMP+2*r+1}")
        for r in range(4): g.append(f"v_accvgpr_write_b32 a{4*k+r}, v{ob+r}")
    return g
def vstore(k):
    b, p = k >> 2, k & 3
    off = (b & 1)*128 + (b >> 1)*4096 + (p & 1)*2048 + (p >> 1)*32768
    return [f"s_add_u32 s{sT2}, s{sVOUT}, {off & ~0xfff}",
            f"buffer_store_dwordx4 {ar(4*k,4)}, v{vST16}, {sr(SRD_VS,4)}, s{sT2} offen offset:{off & 0xfff}{KVST}"]
VDEFER = os.environ.get('VDEFER', '0') == '1'
NV0 = 12 if VDEFER else 0

def uoff(seq): return (seq % 10) * UNIT

FR = [(32, 48), (64, 80)]
def q_reads(setn, t, sig):
    cb, wb = FR[setn]
    r = []
    xo = uoff(65 + 3*t)
    wo = uoff(64 + 3*t + (2 if sig >= 2 else 0))
    sp = sig & 1
    xa = 26 + 2*setn; wa = 27 + 2*setn
    r.append(f"v_add_u32 v{xa}, {xo}, v{vBC+sig}")
    r.append(f"v_add_u32 v{wa}, {wo}, v{vBWQ}")
    for tt in range(4):
        r.append(f"ds_read_b128 {vr(cb+4*tt,4)}, v{xa} offset:{tt*4096}")
        if tt < 2:
            off = tt * 512 + sp * 2048
            r.append(f"ds_read_b64_tr_b16 {vr(wb+4*tt,2)}, v{wa} offset:{off}")
            r.append(f"ds_read_b64_tr_b16 {vr(wb+4*tt+2,2)}, v{wa} offset:{off+256}")
    return r
def q_mfmas(setn, first):
    cb, wb = FR[setn]
    m = []
    for i in range(2):
        for tt in range(4):
            acc = vr(vQACC + (i*4+tt)*16, 16)
            c = "0" if first else acc
            m.append(f"v_mfma_f32_32x32x16_bf16 {acc}, {vr(wb+4*i,4)}, {vr(cb+4*tt,4)}, {c}")
    return m

def q_pass(A, qseq, ep, hook):
    vm = []
    for sq in range(60, 73): vm += [sq]*4
    nblk = 28
    per_blk = (len(ep) + nblk - 3) // (nblk - 2)
    epi = 0; nextseq = 73; setn = 0
    for t in range(7):
        for sig in range(4):
            A("s_waitcnt lgkmcnt(0)")
            if sig == 3 and t < 6:
                need = 69 + 3*t
                idx = max(i for i, x in enumerate(vm) if isinstance(x, int) and x <= need)
                A(f"s_waitcnt vmcnt({min(len(vm) - 1 - idx, 63)})"); A("s_barrier")
                hook(A, t)
                mark = len(vm)
            if sig < 3: f = q_reads(setn ^ 1, t, sig+1)
            elif t < 6: f = q_reads(setn ^ 1, t+1, 0)
            else: f = []
            d = []; dtag = None
            if sig in (0, 1, 3) and nextseq <= 84 and not (t == 0 and sig == 1):
                d = flatten(qseq(nextseq)); dtag = nextseq; nextseq += 1
            e = ep[epi: epi + per_blk]; epi += per_blk
            mf = q_mfmas(setn, t == 0 and sig == 0)
            gaps = [[] for _ in mf]
            for i, x in enumerate(f): gaps[(i * 5) // max(len(f), 1)].append(x)
            for i, x in enumerate(d): gaps[(i * 8) // max(len(d), 1)].append(x)
            for i, x in enumerate(e): gaps[(i * 8) // max(len(e), 1)].append(x)
            for m_, gl in zip(mf, gaps):
                A(m_)
                for g in gl:
                    for x in (g if isinstance(g, list) else [g]):
                        A(x)
                        if x.startswith("buffer_"): vm.append(dtag if " lds" in x else "st")
            setn ^= 1
    assert epi >= len(ep)
    return len(vm) - mark

def q_exchange(A, isv):
    A("s_nop 7")
    A("s_barrier")
    A("v_and_b32 v26, 63, v0"); A("v_lshlrev_b32 v26, 4, v26")
    A(f"v_add_u32 v27, s{sW4096}, v26")
    if not isv:
        A(f"s_sub_u32 s{sT0}, 15, s{sI}"); A(f"s_lshl_b32 s{sT0}, s{sT0}, 16"); A(f"s_lshl_b32 s{sT1}, s{sHD}, 20")
        A(f"s_add_u32 s{sT3}, s{sT0}, s{sT1}")
        if WS_Q: A(f"s_add_u32 s{sT3}, s{sT3}, {WS_Q}")
    n = 0
    for tt in range(4):
        for i in range(2):
            base = vQACC + (i*4+tt)*16
            for t in range(2):
                ob = 32 + (n & 7)*4
                for r in range(4):
                    A(f"v_cvt_pk_bf16_f32 v{ob+r}, v{base+8*t+2*r}, v{base+8*t+2*r+1}")
                off = tt*16384 + i*2048 + t*1024
                A(f"ds_write_b128 v27, {vr(ob,4)} offset:{off}")
                if not isv:
                    if (i, t) == (0, 0) and tt: A(f"s_add_u32 s{sT3}, s{sT3}, 16384")
                    A(f"buffer_store_dwordx4 {vr(ob,4)}, v27, {sr(SRD_WS,4)}, s{sT3} offen offset:{i*2048+t*1024}{KVST}")
                n += 1
def q_exchange_read(A, isv):
    A(f"s_lshl_b32 s{sT0}, s{sW}, 14")
    A("v_and_b32 v26, 63, v0"); A("v_lshlrev_b32 v26, 4, v26"); A(f"v_add_u32 v26, s{sT0}, v26")
    ab = aQ2 if isv else aQ
    for sl in range(16): A(f"ds_read_b128 {ar(ab+4*sl,4)}, v26 offset:{sl*1024}")

LA = int(os.environ.get("LA", "8"))
PART_STRIDE = 4*33*1024
vDMA0, vDMA1, vL16, vRD, vRDN = 252, 253, 3, 4, 5
vFLG, vFLA = 250, 251
vMC, vL, vTS0, vTS1, vTHRB, vSMC, vSL = 6, 7, 8, 9, 10, 11, 12
vU0, vU1, vU2 = 13, 14, 15
S = [16, 48]
P = [80, 96]
vT = 112
vFR = 128
aO, aQ, aQ2 = 0, 128, 192
def f32(x): return "0x%08x" % struct.unpack("<I", struct.pack("<f", x))[0]
CSCALE = 1.4426950408889634 / 16.0
BIG = 2.0**64
THR = 2.0**24

def dma_tile(off, base, pos, end=None):
    g = []
    g.append([f"s_add_u32 m0, s{sADST}, s{sW8192}", "s_nop 0"])
    for j in range(4):
        o = f" offset:{j*1024}" if j else ""
        g.append(f"buffer_load_dwordx4 v{vDMA0}, {sr(SRD_WS,4)}, s{off} offen{o} lds")
    g.append([f"s_add_u32 m0, m0, 4096"] + wrap_add(sADST, SLOT, sT0))
    for j in range(4):
        o = f" offset:{j*1024}" if j else ""
        g.append(f"buffer_load_dwordx4 v{vDMA1}, {sr(SRD_WS,4)}, s{off} offen{o} lds")
    g.append([f"s_add_u32 s{pos}, s{pos}, 1", f"s_add_u32 s{off}, s{off}, {SLOT}",
              f"s_cmp_eq_u32 s{pos}, s{sN1}", f"s_cselect_b32 s{off}, s{base}, s{off}"])
    if end is None: g.append([f"s_cmp_ge_u32 s{pos}, s{sNT}", f"s_cselect_b32 s{off}, {OOB}, s{off}"])
    else: g.append([f"s_cmp_eq_u32 s{pos}, s{sNT}", f"s_cselect_b32 s{off}, s{end}, s{off}"])
    return g
dK = lambda: dma_tile(sKOFF, sKBASE, sKPOS, sKEND)
dV = lambda: dma_tile(sVOFF, sVBASE, sVPOS)

def softmax_half(buf, st):
    sb = S[buf] + 16*st; pb = P[buf] + 8*st
    ts = vTS0 if st == 0 else vTS1
    f = []
    for g in range(4):
        tb = vT + (g & 1)*4 + st*8
        for r in range(4): f.append(f"v_fma_f32 v{tb+r}, v{sb+4*g+r}, s{sC}, -v{vMC}")
        for r in range(4): f.append(f"v_exp_f32 v{tb+r}, v{tb+r}")
        if g == 0: f.append(f"v_add_f32 v{ts}, v{tb}, v{tb+1}")
        else:
            f.append(f"v_add_f32 v{ts}, v{ts}, v{tb}"); f.append(f"v_add_f32 v{ts}, v{ts}, v{tb+1}")
        f.append(f"v_cvt_pk_bf16_f32 v{pb+2*g}, v{tb}, v{tb+1}")
        f.append(f"v_add_f32 v{ts}, v{ts}, v{tb+2}"); f.append(f"v_add_f32 v{ts}, v{ts}, v{tb+3}")
        f.append(f"v_cvt_pk_bf16_f32 v{pb+2*g+1}, v{tb+2}, v{tb+3}")
    return f
def fr(k): return vr(vFR + 4*(k % 16), 4)
ALT = os.environ.get("ALT", "0") == "1"
QK_ORDER = [(k & 1, k >> 1) for k in range(32)] if ALT else [(k >> 4, k & 15) for k in range(32)]
PV_ORDER = [(2*(k >> 3) + (k & 1), (k >> 1) & 3) for k in range(32)] if ALT else [(k >> 2, k & 3) for k in range(32)]
QK_OFF = [(st*16+sl)*1024 for st, sl in QK_ORDER]
PV_OFF = [(dt*4+ks)*1024 for dt, ks in PV_ORDER]
def qk_mfmas(buf):
    m = []
    for k, (st, sl) in enumerate(QK_ORDER):
        acc = vr(S[buf] + 16*st, 16)
        c = "0" if sl == 0 else acc
        m.append(f"v_mfma_f32_32x32x16_bf16 {acc}, {fr(k)}, {ar(aQ+4*sl,4)}, {c}")
    return m
def pv_mfmas(buf, fresh=False):
    m = []
    for k, (dt, ks) in enumerate(PV_ORDER):
        acc = ar(aO + 16*dt, 16)
        c = "0" if (fresh and ks == 0) else acc
        m.append(f"v_mfma_f32_32x32x16_bf16 {acc}, {fr(k)}, {vr(P[buf]+4*ks,4)}, {c}")
    return m

PSCHED = os.environ.get("PSCHED", "1")
def icost(x):
    if isinstance(x, (list, tuple)): return sum(icost(y) for y in x)
    if x.endswith(":"): return 0
    if x.startswith("v_exp"): return 8
    if x.startswith("buffer_"): return int(os.environ.get("VMC", "16"))
    return 4
def phase(A, mf, valu, dma, uid, extra=None, prior=None):
    isqk = 'a[128:131]' in mf[0]
    OFF = QK_OFF if isqk else PV_OFF
    NOFF = QK_OFF if (uid == 'P0' or not isqk) else PV_OFF
    if ALT and not isqk: valu = ['s_nop 7'] + valu
    gaps = [[] for _ in range(32)]
    lim = 32 - LA - 1
    if PSCHED == "0":
        nd = len(dma)
        for i, d in enumerate(dma): gaps[(i * lim) // nd].append(d)
        gaps[1].append(wrap_add(sRD, SLOT, sT1))
        gaps[3].append(f"v_add_u32 v{vRDN}, s{sRD}, v{vL16}")
    else:
        misc = flatten([x for x in flatten([wrap_add(sRD, SLOT, sT1)])] + [f"v_add_u32 v{vRDN}, s{sRD}, v{vL16}"] + dma)
        misc = [x for x in misc if x != "s_nop 0"]
        tot = sum(icost(x) for x in misc); acc = 0; g = 0; last_m0 = -1
        for x in misc:
            g = max(g, min(lim - 1, (acc * lim) // tot))
            if isinstance(x, str) and x.startswith("buffer_") and g <= last_m0: g = last_m0 + 1
            gaps[g].append(x); acc += icost(x)
            if isinstance(x, str) and " m0," in x: last_m0 = g
    if extra:
        for g, ops in extra.items(): gaps[g] += ops
    def nvm(gl):
        n = 0
        for g in gl:
            for x in (g if isinstance(g, (list, tuple)) else [g]):
                if x.startswith("buffer_"): n += 1
        return n
    before = sum(nvm(gaps[k]) for k in range(32 - LA))
    total = sum(nvm(gaps[k]) for k in range(32))
    for k in range(32):
        kk = k + LA
        if kk < 32:
            gaps[k].insert(0, f"ds_read_b128 {fr(kk)}, v{vRD} offset:{OFF[kk]}")
        else:
            x = []
            if kk == 32:
                if prior is None:
                    x += [f"s_cmp_lg_u32 s{sFLUSH}, 0", f"s_cbranch_scc1 F_W49_{uid}", "s_waitcnt vmcnt(16)", f"F_WD_{uid}:", "s_barrier"]
                else:
                    x += [f"s_waitcnt vmcnt({min(prior + before, 63)})", "s_barrier"]
            x.append(f"ds_read_b128 {fr(kk)}, v{vRDN} offset:{NOFF[kk-32]}")
            gaps[k].insert(0, x)
    nv = len(valu)
    if PSCHED == "0":
        for i, v in enumerate(valu): gaps[(i * 31) // max(nv,1)].append(v)
    elif nv:
        base = [icost(gaps[k]) + (4 if (k + 1) % 4 == 0 else 0) for k in range(32)]
        target = (sum(base) + sum(icost(v) for v in valu)) / 32.0
        vi = 0; carry = 0.0
        for k in range(32):
            room = target - base[k] + carry
            while vi < nv and (icost(valu[vi]) <= room + 2 or k == 31):
                gaps[k].append(valu[vi]); room -= icost(valu[vi]); vi += 1
            carry = room
    for k in range(32):
        if k % 4 == 0: A(f"s_waitcnt lgkmcnt({LA-4})")
        A(mf[k])
        for g in gaps[k]: put(A, g)
    A(f"v_mov_b32 v{vRD}, v{vRDN}")
    return total

def rowmax(A, buf, dst):
    sb = S[buf]
    A(f"v_max3_f32 v{dst}, v{sb}, v{sb+1}, v{sb+2}")
    for r in range(3, 31, 2): A(f"v_max3_f32 v{dst}, v{dst}, v{sb+r}, v{sb+r+1}")
    A(f"v_max_f32 v{dst}, v{dst}, v{sb+31}")
    A(f"v_mov_b32 v{vU2}, v{dst}")
    A("s_nop 1")
    A(f"v_permlane32_swap_b32 v{vU2}, v{dst}")
    A("s_nop 1")
    A(f"v_max_f32 v{dst}, v{dst}, v{vU2}")


def rank_li(A, dst, excl_type, t):
    A(f"s_sub_u32 s{dst}, s{sLI}, 4")
    A(f"s_lshr_b32 s{t}, s{sLI}, 2"); A(f"s_lshl_b32 s{t}, s{t}, 1")
    A(f"s_and_b32 s{t+1}, s{sLI}, 1"); A(f"s_add_u32 s{t}, s{t}, s{t+1}")
    A(f"s_cmp_eq_u32 s{sTYPE}, {excl_type}"); A(f"s_cselect_b32 s{t}, 99, s{t}")
    A(f"s_cmp_lt_u32 s{sLI}, 8"); A(f"s_cselect_b32 s{dst}, s{t}, s{dst}")


CODEPF = os.environ.get("CODEPF", "1") == "1"
def code_prefetch(A, uid, start, end, va, vd, neg=False):
    if not CODEPF: return
    A(".p2align 3")
    A(f"s_getpc_b64 s[{sT2}:{sT3}]")
    A.label(f"F_PC_{uid}")
    if neg:
        A(f"s_sub_u32 s{sT2}, s{sT2}, F_PC_{uid}-{start}"); A(f"s_subb_u32 s{sT3}, s{sT3}, 0")
    else:
        A(f"s_add_u32 s{sT2}, s{sT2}, {start}-F_PC_{uid}"); A(f"s_addc_u32 s{sT3}, s{sT3}, 0")
    if uid.startswith("A2") or uid.startswith("A3"):
        A(f"s_lshr_b32 s{sT0}, s{sLI}, 2"); A(f"s_lshl_b32 s{sT0}, s{sT0}, 1"); A(f"s_and_b32 s{sT1}, s{sLI}, 1"); A(f"s_add_u32 s{sT0}, s{sT0}, s{sT1}")
        A(f"s_lshl_b32 s{sT0}, s{sT0}, 2"); A(f"s_add_u32 s{sT0}, s{sT0}, s{sW}")
        A(f"v_and_b32 v{va}, 3, v0"); A(f"v_lshlrev_b32 v{va}, 6, v{va}")
    else:
        A(f"s_lshl_b32 s{sT0}, s{sLI}, 2"); A(f"s_add_u32 s{sT0}, s{sT0}, s{sW}")
        A(f"v_and_b32 v{va}, 3, v0"); A(f"v_lshlrev_b32 v{va}, 7, v{va}")
    A(f"v_add_u32 v{va}, s{sT0}, v{va}"); A(f"v_lshlrev_b32 v{va}, 7, v{va}")
    A(f"v_min_u32 v{va}, {end}-{start}-4, v{va}")
    A("s_mov_b64 exec, 15")
    A(f"global_load_dword v{vd}, v{va}, s[{sT2}:{sT3}]")
    A("s_mov_b64 exec, -1")

def release_if_slow(A, uid):
    A(f"s_cmp_lg_u32 s{sFAST}, 0"); A(f"s_cbranch_scc1 F_REL_{uid}")
    A("buffer_wbl2 sc1"); A("s_waitcnt vmcnt(0)")
    A.label(f"F_REL_{uid}")

def flag_store(A, uid, word_sreg_expr, vt):
    A(f"s_cmp_lg_u32 s{sW}, 0"); A(f"s_cbranch_scc1 F_FS_{uid}")
    release_if_slow(A, uid)
    for x in word_sreg_expr: A(x)
    A(f"s_add_u32 s{sT1}, s{sT1}, s{sFL}")
    A(f"v_mov_b32 v{vt}, 1"); A(f"v_mov_b32 v{vt+1}, 0")
    A("s_mov_b64 exec, 1")
    A(f"buffer_store_dword v{vt}, v{vt+1}, {sr(SRD_WS,4)}, s{sT1} offen sc1")
    A("s_mov_b64 exec, -1")
    A.label(f"F_FS_{uid}")
KVWORD = lambda: [f"s_lshr_b32 s{sT1}, s{sLI}, 1", f"s_lshl_b32 s{sT1}, s{sT1}, 2"]
PWORD = lambda: [f"s_lshl_b32 s{sT1}, s{sI}, 2", f"s_add_u32 s{sT1}, s{sT1}, 64"]

def reg_load():
    return [f"buffer_load_dword v{vGM}, v{vGM+1}, {sr(SRD_DBG,4)}, 0 offen sc1"]
def reg_check(A, uid, t):
    A.label(f"F_CHK_{uid}")
    A(f"v_subrev_u32 v{t}, 0x01010101, v{vGM}"); A(f"v_not_b32 v{t+1}, v{vGM}")
    A(f"v_and_b32 v{t}, v{t}, v{t+1}"); A(f"v_and_b32 v{t}, 0x80808080, v{t}")
    A(f"v_cmp_ne_u32 vcc, 0, v{t}")
    A(f"s_cbranch_vccz F_CHK_OK_{uid}")
    A("s_sleep 4")
    for x in reg_load(): A(x)
    A("s_waitcnt vmcnt(0)")
    A(f"s_branch F_CHK_{uid}")
    A.label(f"F_CHK_OK_{uid}")
    A(f"s_add_u32 s{sT0}, s{sXCC}, 1"); A(f"s_mul_i32 s{sT0}, s{sT0}, 0x01010101")
    A(f"v_and_b32 v{t}, 0x7f7f7f7f, v{vGM}")
    A(f"v_cmp_eq_u32 s[{sT2}:{sT3}], s{sT0}, v{t}")
    A(f"s_lshl_b32 s{sT1}, s{sHD}, 2")
    A("s_nop 3")
    A(f"s_lshr_b64 s[{sT2}:{sT3}], s[{sT2}:{sT3}], s{sT1}")
    A(f"s_and_b32 s{sT2}, s{sT2}, 15")
    A(f"s_cmp_eq_u32 s{sT2}, 15"); A(f"s_cselect_b32 s{sFAST}, 1, 0")
    if KVST and PST: A(f"s_mov_b32 s{sFAST}, 1")
    if os.environ.get("FORCE_SLOW"): A(f"s_mov_b32 s{sFAST}, 0")

KC = 4160
XR_BYTES = 7680
CH_LDS = 8*KC + XR_BYTES + 4352
CONV_BASE = 65536
assert CONV_BASE + 2*CH_LDS <= LDS
def conv_scalars(A):
    SRD_SSM, SRD_DD = 28, 32
    rank_li(A, sCR, 1, sT0); rank_li(A, sTRK, 0, sT0)
    A(f"s_cmp_lg_u32 s{sCR}, 99"); A(f"s_cselect_b32 s{sT0}, 1835008, 0"); A(f"s_cselect_b32 s{sT1}, 896, 0")
    srd(A, SRD_SSM, "s26", "s27", f"s{sT0}"); srd(A, SRD_DD, "s78", "s79", f"s{sT1}")
    A(f"s_lshl_b32 s44, s{sCR}, 3"); A(f"s_add_u32 s44, s44, s{sX}"); A("s_lshl_b32 s44, s44, 1")
    A(f"s_lshr_b32 s{sT0}, s{sW}, 1"); A(f"s_and_b32 s46, s{sW}, 1")
    A(f"s_add_u32 s48, s44, s{sT0}")
def kern_loads(A, ab):
    SRD_SSM, SRD_DD = 28, 32
    A(f"v_lshlrev_b32 v30, 2, v{vGM+1}")
    A("v_subrev_u32 v31, 16, v30"); A("v_max_i32 v31, 0, v31")
    A(f"s_lshl_b32 s{sT0}, s48, 12")
    for j in range(4):
        e = ab + 8*j
        if j == 0: A(f"buffer_load_dwordx4 {ar(e,4)}, v31, {sr(SRD_SSM,4)}, s{sT0} offen")
        else:      A(f"buffer_load_dwordx4 {ar(e,4)}, v30, {sr(SRD_SSM,4)}, s{sT0} offen offset:{j*1024-16}")
        A(f"buffer_load_dwordx4 {ar(e+4,4)}, v30, {sr(SRD_SSM,4)}, s{sT0} offen offset:{j*1024}")
    A(f"s_lshl_b32 s{sT1}, s48, 1")
    A(f"buffer_load_ushort a{ab+32}, v{vZ}, {sr(SRD_DD,4)}, s{sT1} offen")
def xq_loads(A):
    sD, sKB, sXR, sQR, sD0, sOO, sP = 40, 41, 42, 43, 44, 45, 46
    A(f"s_mov_b32 s{sD}, s48"); A(f"s_lshr_b32 s{sT0}, s{sW}, 1")
    A(f"s_mul_i32 s{sKB}, s{sT0}, {CH_LDS}"); A(f"s_add_u32 s{sKB}, s{sKB}, {CONV_BASE}")
    A(f"s_add_u32 s{sXR}, s{sKB}, {8*KC}"); A(f"s_add_u32 s{sQR}, s{sXR}, {XR_BYTES}")
    A("v_and_b32 v5, 63, v0"); A("v_lshlrev_b32 v1, 4, v5")
    A(f"s_lshl_b32 s{sT0}, s{sD}, 12")
    A(f"s_mul_i32 s{sT1}, s{sP}, {WS_QT - WS_KVT}"); A(f"s_add_u32 s{sT1}, s{sT1}, s{sT0}"); A(f"s_add_u32 s{sT1}, s{sT1}, {WS_KVT}")
    for j in range(4): A(f"buffer_load_dwordx4 {vr(64+4*j,4)}, v1, {sr(SRD_WS,4)}, s{sT1} offen offset:{j*1024} sc1")
def kern_move(A, ab):
    for r in range(32): A(f"v_accvgpr_read_b32 v{128+r}, a{ab+r}")
    A(f"v_accvgpr_read_b32 v12, a{ab+32}")

def conv(A, tag):
    SRD_SSM, SRD_DD, SRD_OUT = 28, 32, 36
    sD, sKB, sXR, sQR, sD0, sOO, sP, sSEL = 40, 41, 42, 43, 44, 45, 46, 47
    vAA, vBA, vAA2, vBA2 = 2, 3, 4, 15
    A("v_and_b32 v6, 31, v5"); A("v_lshrrev_b32 v7, 5, v5")
    for r in range(4): A(f"v_mov_b32 v{80+r}, 0")
    A(f"v_add_u32 v13, s{sXR}, v1")
    A(f"s_cmp_lg_u32 s{sP}, 0"); A(f"s_cbranch_scc1 F_CZ_{tag}")
    A(f"ds_write_b128 v13, v[80:83] offset:5120")
    A(f"ds_write_b128 v13, v[80:83] offset:6144")
    A(f"ds_write_b128 v13, v[80:83] offset:{7680-1024}")
    A.label(f"F_CZ_{tag}")
    A(f"s_xor_b32 s{sT0}, s{sP}, 1"); A(f"s_mul_i32 s{sT0}, s{sT0}, {KC}"); A(f"s_add_u32 s{sT0}, s{sT0}, s{sKB}")
    A("v_and_b32 v8, 3, v5"); A("v_lshrrev_b32 v9, 2, v5"); A("v_and_b32 v9, 3, v9")
    A("v_min_u32 v9, 2, v9")
    A(f"v_mul_u32_u24 v8, {2*KC}, v8"); A("v_lshlrev_b32 v9, 4, v9"); A(f"v_add3_u32 v8, v8, v9, s{sT0}")
    A("ds_write_b128 v8, v[80:83]")
    A(f"v_add_u32 v13, s{sT0}, v1")
    A("v_lshrrev_b32 v14, 2, v5"); A("v_and_b32 v10, 3, v5"); A("v_lshlrev_b32 v10, 4, v10")
    A(f"s_mov_b32 s{sT1}, 68")
    A(f"s_cmp_eq_u32 s{sP}, 0")
    A(f"s_cselect_b32 s{sT1}, 80, s{sT1}"); A(f"s_cselect_b32 s{sT3}, s{sXR}, s{sQR}")
    A(f"s_mov_b32 s{sSEL}, 0x05040302"); A(f"s_cselect_b32 s{sSEL}, 0x07060504, s{sSEL}")
    A(f"v_mul_lo_u32 v14, v14, s{sT1}"); A(f"v_add3_u32 v14, v14, v10, s{sT3}")
    A(f"s_lshl_b32 s{sT1}, s{sT1}, 4")
    A("v_cmp_eq_u32 vcc, 0, v5")
    A("s_nop 1")
    for j in range(4):
        e = 128 + 8*j
        if j == 0:
            for k in range(4): A(f"v_cndmask_b32 v{e+k}, v{e+k}, v80, vcc")
        o = 160 + 16*(j & 1); o2 = o + 8
        for k in range(7): A(f"v_perm_b32 v{o+k}, v{e+k+1}, v{e+k}, s{sSEL}")
        for k in range(1, 7): A(f"v_perm_b32 v{o2+k-1}, v{e+k+1}, v{e+k}, s{sSEL}")
        for a_ in range(4):
            src = (o + a_) if a_ % 2 == 0 else (o2 + a_ - 1)
            A(f"ds_write_b128 v13, {vr(src,4)} offset:{a_*2*KC + 48 + j*1024}")
    A(f"s_waitcnt vmcnt({NV0})")
    for j in range(4):
        A(f"ds_write2_b32 v14, v{64+4*j}, v{65+4*j} offset0:0 offset1:1")
        A(f"ds_write2_b32 v14, v{66+4*j}, v{67+4*j} offset0:2 offset1:3")
        if j < 3: A(f"v_add_u32 v14, s{sT1}, v14")
    A("v_and_b32 v8, 7, v6"); A(f"v_mul_u32_u24 v8, {KC}, v8"); A("v_lshrrev_b32 v9, 3, v6"); A("v_add_u32 v9, v9, v7"); A("v_lshlrev_b32 v9, 4, v9")
    A(f"v_add3_u32 v8, v8, v9, s{sKB}")
    A("v_sub_u32 v9, 31, v6"); A("v_mul_u32_u24 v9, 80, v9"); A("v_lshlrev_b32 v10, 4, v7"); A(f"v_add3_u32 v9, v9, v10, s{sXR}")
    A(f"s_cmp_eq_u32 s{sP}, 0")
    A(f"s_cselect_b32 s{sT0}, 0, {32*32}"); A(f"v_add_u32 v{vAA}, s{sT0}, v8")
    A(f"s_cselect_b32 s{sT0}, 0, {96*32}"); A(f"v_add_u32 v{vAA2}, s{sT0}, v8")
    A(f"s_mov_b32 s{sT1}, {16*80}"); A(f"s_cselect_b32 s{sT0}, 2560, s{sT1}"); A(f"v_add_u32 v{vBA}, s{sT0}, v9")
    A(f"s_cselect_b32 s{sT0}, 0, {48*80}"); A(f"v_add_u32 v{vBA2}, s{sT0}, v9")
    pst(A, "cset")
    A("s_waitcnt lgkmcnt(0)"); A("s_barrier")
    A(flag_load())
    pst(A, "cloop")
    ACC, FRG, NR, LAH = 96, 128, 8, 6
    nvs = [NV0, 0]
    def reads(n):
        b = FRG + 8*(n % NR)
        sg = n if n < 64 else n - 64
        aa, ba = (vAA, vBA) if n < 64 else (vAA2, vBA2)
        return [f"ds_read_b128 {vr(b,4)}, v{aa} offset:{32*sg}",
                f"ds_read_b128 {vr(b+4,4)}, v{ba} offset:{(sg >> 1)*80 + (sg & 1)*32}"]
    A("s_waitcnt lgkmcnt(0)")
    for n in range(LAH):
        for x in reads(n): A(x)
    for n in range(96):
        cnt = 2*(min(n+LAH, 96) - n - 1)
        A(f"s_waitcnt lgkmcnt({cnt})")
        b = FRG + 8*(n % NR)
        acc = vr(ACC if n < 64 else ACC+16, 16)
        c = "0" if n in (0, 64) else acc
        A(f"v_mfma_f32_32x32x16_bf16 {acc}, {vr(b,4)}, {vr(b+4,4)}, {c}")
        if n + LAH < 96:
            for x in reads(n + LAH): A(x)
        if VDEFER and n % 3 == 0 and nvs[0] < 32:
            put(A, vstore(nvs[0])); nvs[0] += 1; nvs[1] += 1
        if n >= 62 and n < 94:
            for r in range(4): A(f"v_accvgpr_write_b32 a{aO + 4*(n-62) + r}, 0")
        if n in (30, 60, 90):
            early_check(A, f"C{n}", n != 90, nvs[1]); nvs[1] = 0
    pst(A, "cend")
    XE, QE = 32, 48
    A("v_sub_u32 v8, 63, v6"); A(f"s_lshl_b32 s{sT0}, s{sP}, 5"); A(f"v_subrev_u32 v8, s{sT0}, v8")
    A("v_mul_u32_u24 v9, 80, v8"); A("v_lshlrev_b32 v10, 3, v7"); A("v_sub_u32 v9, v9, v10"); A(f"v_add_u32 v9, s{sXR}, v9")
    A("v_mul_u32_u24 v13, 68, v8"); A("v_sub_u32 v13, v13, v10"); A(f"v_add_u32 v13, s{sQR}, v13")
    for g in range(4):
        A(f"ds_read_b64 {vr(XE+g*2,2)}, v9 offset:{56 - 16*g}")
        dw = (56 - 16*g)//4
        A(f"ds_read2_b32 {vr(QE+g*2,2)}, v13 offset0:{dw} offset1:{dw+1}")
    A(f"v_add_u32 v14, s{sKB}, v1")
    A("s_nop 7")
    A(f"s_cmp_lg_u32 s{sP}, 0"); A(f"s_cbranch_scc1 F_CX_{tag}")
    for g in range(4): A(f"ds_write_b128 v14, {vr(ACC+16+4*g,4)} offset:{g*KC}")
    A.label(f"F_CX_{tag}")
    A("s_waitcnt lgkmcnt(0)")
    A("v_lshlrev_b32 v12, 16, v12")
    A("s_barrier")
    pst(A, "cbar")
    A(f"s_cmp_eq_u32 s{sP}, 0"); A(f"s_cbranch_scc1 F_CY_{tag}")
    for g in range(4): A(f"ds_read_b128 {vr(64+4*g,4)}, v14 offset:{g*KC}")
    for r in range(16): A(f"v_add_f32 v{ACC+r}, v{ACC+r}, v{ACC+16+r}")
    A("s_waitcnt lgkmcnt(0)")
    for r in range(16): A(f"v_add_f32 v{ACC+r}, v{ACC+r}, v{64+r}")
    A.label(f"F_CY_{tag}")
    A("v_lshlrev_b32 v8, 6, v6"); A("v_lshlrev_b32 v9, 3, v7"); A("v_add_u32 v8, v8, v9")
    A(f"s_lshl_b32 s{sOO}, s{sD}, 12"); A(f"s_lshl_b32 s{sT0}, s{sP}, 11"); A(f"s_add_u32 s{sOO}, s{sOO}, s{sT0}")
    A(f"s_add_u32 s{sOO}, s{sOO}, {WS_OT}")
    T = 16
    for g in range(4):
        y = ACC + 4*g
        xe = XE + g*2; qe = QE + g*2
        xf = [T+3, T+2, T+1, T+0]
        A(f"v_lshlrev_b32 v{T+0}, 16, v{xe}");  A(f"v_and_b32 v{T+1}, 0xffff0000, v{xe}")
        A(f"v_lshlrev_b32 v{T+2}, 16, v{xe+1}"); A(f"v_and_b32 v{T+3}, 0xffff0000, v{xe+1}")
        for r in range(4): A(f"v_mul_f32 v{xf[r]}, v{xf[r]}, v12")
        A(f"v_cvt_pk_bf16_f32 v{T+4}, v{xf[0]}, v{xf[1]}"); A(f"v_cvt_pk_bf16_f32 v{T+5}, v{xf[2]}, v{xf[3]}")
        A(f"v_cvt_pk_bf16_f32 v{T+6}, v{y}, v{y+1}"); A(f"v_cvt_pk_bf16_f32 v{T+7}, v{y+2}, v{y+3}")
        for p in range(2):
            A(f"v_lshlrev_b32 v{T+8+2*p}, 16, v{T+4+p}"); A(f"v_and_b32 v{T+9+2*p}, 0xffff0000, v{T+4+p}")
            A(f"v_lshlrev_b32 v{T+12+2*p}, 16, v{T+6+p}"); A(f"v_and_b32 v{T+13+2*p}, 0xffff0000, v{T+6+p}")
        for r in range(4): A(f"v_add_f32 v{T+8+r}, v{T+12+r}, v{T+8+r}")
        A(f"v_cvt_pk_bf16_f32 v{T+4}, v{T+8}, v{T+9}"); A(f"v_cvt_pk_bf16_f32 v{T+5}, v{T+10}, v{T+11}")
        for p in range(2):
            A(f"v_lshlrev_b32 v{T+8+2*p}, 16, v{T+4+p}"); A(f"v_and_b32 v{T+9+2*p}, 0xffff0000, v{T+4+p}")
        A(f"v_lshlrev_b32 v{T+0}, 16, v{qe}");  A(f"v_and_b32 v{T+1}, 0xffff0000, v{qe}")
        A(f"v_lshlrev_b32 v{T+2}, 16, v{qe+1}"); A(f"v_and_b32 v{T+3}, 0xffff0000, v{qe+1}")
        for r in range(4): A(f"v_mul_f32 v{T+8+r}, v{xf[r]}, v{T+8+r}")
        A(f"v_cvt_pk_bf16_f32 v{64+2*g}, v{T+8}, v{T+9}"); A(f"v_cvt_pk_bf16_f32 v{65+2*g}, v{T+10}, v{T+11}")
        A(f"buffer_store_dwordx2 {vr(64+2*g,2)}, v8, {sr(SRD_WS,4)}, s{sOO} offen offset:{16*g} sc1")


FUSE3 = os.environ.get("FUSE3", "1") == "1"
CTXLD = os.environ.get("CTXLD", " sc1")
WEARLY = os.environ.get("WEARLY", "1") == "1"
MPF = os.environ.get("MPF", "0") == "1"
CPT = os.environ.get("CPT", "0") == "1"
KPT = os.environ.get("KPT", "0") == "1"
PTF = os.environ.get("PTF", " nt")
OPX = os.environ.get('OPX', '')
CPSTEP = int(os.environ.get('CPSTEP', '2'))
WOPF = int(os.environ.get("WOPF", "0"))
WS_FLAG2 = WS_FLAG + 4096
SRD_WO, SRD_OUT = 28, 32
sQB, sMB, sLB, sCX, sWO, sWB, sCB, sWC, sCC, sTRO = 36, 37, 38, 39, 40, 41, 42, 43, 44, 45
DW, DC, WLDS = int(os.environ.get("DW", "10")), int(os.environ.get("DC", "7")), 40960
vOW = [240, 241, 242, 243]
def outproj_setup(A):
    A("s_load_dwordx2 s[46:47], s[0:1], 40"); A("s_load_dwordx2 s[48:49], s[0:1], 96")
    A(f"s_mul_hi_u32 s{sT2}, s{sTRK}, 0x24924925")
    A(f"s_mul_i32 s{sT3}, s{sT2}, 7"); A(f"s_sub_u32 s{sMB}, s{sTRK}, s{sT3}")
    A(f"s_lshl_b32 s{sQB}, s{sX}, 2"); A(f"s_add_u32 s{sQB}, s{sQB}, s{sT2}")
    A("v_and_b32 v244, 63, v0")
    A("v_lshrrev_b32 v245, 2, v244"); A("v_and_b32 v245, 7, v245"); A("v_mul_u32_u24 v245, 896, v245")
    A("v_lshrrev_b32 v246, 5, v244"); A("v_lshlrev_b32 v246, 6, v246")
    A("v_and_b32 v247, 3, v244"); A("v_lshlrev_b32 v247, 4, v247")
    A(f"v_add3_u32 v{vOW[0]}, v245, v246, v247")
    for k in range(1, 4): A(f"v_add_u32 v{vOW[k]}, {k*(7168-1024)}, v{vOW[0]}")
    A(f"s_mul_i32 s{sLB}, s{sW}, {WLDS}")
    A(f"s_lshl_b32 s{sCB}, s{sQB}, 19"); A(f"s_lshl_b32 s{sT0}, s{sW}, 16")
    A(f"s_add_u32 s{sCB}, s{sCB}, s{sT0}"); A(f"s_add_u32 s{sCB}, s{sCB}, {WS_CTX}")
    A(f"s_mul_i32 s{sWB}, s{sW}, {1024*896}"); A(f"s_lshl_b32 s{sT0}, s{sMB}, 7"); A(f"s_add_u32 s{sWB}, s{sWB}, s{sT0}")
    A(f"s_lshl_b32 s{sWC}, s{sX}, 2"); A(f"s_mov_b32 s{sCC}, s{sWC}")
    A(f"s_mul_i32 s{sT0}, s{sWC}, {32*896}"); A(f"s_add_u32 s{sWO}, s{sWB}, s{sT0}")
    A(f"s_lshl_b32 s{sT0}, s{sCC}, 11"); A(f"s_add_u32 s{sCX}, s{sCB}, s{sT0}")
    A("s_waitcnt lgkmcnt(0)")
    A(f"s_cmp_lg_u32 s{sTRK}, 99"); A(f"s_cselect_b32 s{sT0}, 3670016, 0")
    srd(A, SRD_WO, "s46", "s47", f"s{sT0}"); srd(A, SRD_OUT, "s48", "s49", 3670016)
def wload_ops(s_):
    slot = s_ % DW
    g = [[f"s_add_u32 m0, s{sLB}, {slot*4096}", "s_nop 0"]]
    for ko in range(4):
        o = f" offset:{ko*1024}" if ko else ""
        g.append(f"buffer_load_dwordx4 v{vOW[ko]}, {sr(SRD_WO,4)}, s{sWO} offen{o} lds")
    g.append([f"s_add_u32 s{sWO}, s{sWO}, {32*896}", f"s_add_u32 s{sWC}, s{sWC}, 1", f"s_cmp_eq_u32 s{sWC}, 32", f"s_cselect_b32 s{sWO}, s{sWB}, s{sWO}"])
    return g

def outproj(A):
    vL, vRB, vC2 = 1, 4, 11
    vCT = 16; vWF = 16 + 16*(DC+1); vACC = vWF + 32; vTR = 244
    assert vACC + 64 <= 240
    A.label("F_OUTPROJ")
    pst(A, "epi")
    A("s_waitcnt vmcnt(0)")
    A("s_barrier")
    pst(A, "ctxdone")
    A(f"s_cmp_lg_u32 s{sW}, 0"); A("s_cbranch_scc1 F_OP_NOF")
    A(f"v_mov_b32 v16, 1"); A("v_mov_b32 v17, 0")
    A("s_mov_b64 exec, 1")
    A(f"buffer_store_dword v16, v17, {sr(SRD_WS,4)}, s{sFL2} offen sc1")
    A("s_mov_b64 exec, -1")
    A.label("F_OP_NOF")
    A(f"s_cmp_eq_u32 s{sTRK}, 99"); A("s_cbranch_scc1 F_DONE")
    A("v_and_b32 v5, 63, v0")
    A(f"v_lshlrev_b32 v{vL}, 4, v5")
    A("v_lshrrev_b32 v6, 5, v5"); A("v_lshlrev_b32 v6, 8, v6")
    A("v_lshrrev_b32 v7, 2, v5"); A("v_and_b32 v7, 3, v7"); A("v_lshlrev_b32 v7, 6, v7")
    A("v_lshrrev_b32 v8, 4, v5"); A("v_and_b32 v8, 1, v8"); A("v_lshlrev_b32 v8, 5, v8")
    A("v_add3_u32 v6, v6, v7, v8")
    A("v_and_b32 v7, 3, v5"); A("v_lshlrev_b32 v7, 3, v7")
    A(f"v_add3_u32 v{vRB}, v6, v7, s{sLB}")
    A(f"v_add_u32 v{vC2}, 262144, v{vL}")
    vm = []
    NC = DC + 1
    def emit_ops(ops, tag):
        for g in ops:
            put(A, g)
            if isinstance(g, str) and g.startswith("buffer_"): vm.append(tag)
    def wload(s_): emit_ops(wload_ops(s_), ("w", s_))
    def cload_ops(s_):
        slot = s_ % NC
        g = []
        for sl in range(2):
            for qt in range(2):
                va = vL if qt == 0 else vC2
                g.append(f"buffer_load_dwordx4 {vr(vCT+16*slot+8*sl+4*qt,4)}, v{va}, {sr(SRD_WS,4)}, s{sCX} offen offset:{sl*1024}{CTXLD}")
        g.append([f"s_add_u32 s{sCX}, s{sCX}, 2048", f"s_add_u32 s{sCC}, s{sCC}, 1", f"s_cmp_eq_u32 s{sCC}, 32", f"s_cselect_b32 s{sCX}, s{sCB}, s{sCX}"])
        return g
    def cload(s_): emit_ops(cload_ops(s_), ("c", s_))
    def wait_for(tags):
        idx = max([i for i, x in enumerate(vm) if x in tags] + [-1])
        A(f"s_waitcnt vmcnt({min(len(vm) - 1 - idx, 63)})")
    def wread_ops(s_, st):
        slot = s_ % DW
        r = []
        for sl in range(2):
            for mt in range(2):
                for rho in range(2):
                    off = slot*4096 + sl*2048 + rho*1024 + mt*512
                    r.append(f"ds_read_b64_tr_b16 {vr(vWF+16*st+8*sl+4*mt+2*rho,2)}, v{vRB} offset:{off}")
        return r
    def wreads(s_, st): flat(A, wread_ops(s_, st))
    def mfma_ops(s_, st):
        slot = s_ % NC
        m = []
        for sl in range(2):
            for mt in range(2):
                for qt in range(2):
                    acc = vr(vACC + 16*(mt*2+qt), 16)
                    m.append(f"v_mfma_f32_32x32x16_bf16 {acc}, {vr(vWF+16*st+8*sl+4*mt,4)}, {vr(vCT+16*slot+8*sl+4*qt,4)}, {acc}")
        return m
    sFA = 50
    A(f"s_lshr_b32 s{sFA}, s{sQB}, 1"); A(f"s_lshl_b32 s{sFA}, s{sFA}, 7"); A(f"s_lshl_b32 s{sT1}, s{sW}, 4")
    A(f"s_add_u32 s{sFA}, s{sFA}, s{sT1}"); A(f"s_add_u32 s{sFA}, s{sFA}, {WS_FLAG2}")
    A("v_and_b32 v12, 3, v5"); A("v_lshlrev_b32 v12, 2, v12"); A("v_lshlrev_b32 v14, 2, v5")
    A(f"buffer_load_dword v13, v12, {sr(SRD_WS,4)}, s{sFA} offen sc1")
    A(f"buffer_load_dword v15, v14, {sr(SRD_DBG,4)}, 0 offen sc1")
    for s_ in range(DW): wload(s_)
    NTCH = 0
    if os.environ.get("WL2", "0") == "1":
        A(f"s_lshl_b32 s{sT0}, s{sTRK}, 2"); A(f"s_add_u32 s{sT0}, s{sT0}, s{sW}"); A(f"s_lshl_b32 s{sT0}, s{sT0}, 15")
        A(f"v_lshlrev_b32 v238, 3, v{vL}")
        for k in range(4):
            A(f"buffer_load_dword v239, v238, {sr(SRD_WO,4)}, s{sT0} offen"); vm.append("x")
            A(f"s_add_u32 s{sT0}, s{sT0}, 8192")
        NTCH = 4
    for r in range(64): A(f"v_mov_b32 v{vACC+r}, 0")
    A(f"s_lshl_b32 s{sT0}, s{sTRK}, 3"); A(f"s_add_u32 s{sT0}, s{sT0}, s{sX}")
    A(f"s_mul_hi_u32 s{sT2}, s{sT0}, 0x24924925"); A(f"s_mul_i32 s{sT3}, s{sT2}, 7"); A(f"s_sub_u32 s{sT3}, s{sT0}, s{sT3}")
    A("v_and_b32 v6, 31, v0"); A("v_lshrrev_b32 v7, 5, v0")
    A(f"v_lshlrev_b32 v{vTR+8}, 13, v6"); A(f"v_lshl_add_u32 v{vTR+8}, v7, 4, v{vTR+8}")
    sTRI = 51
    A(f"s_lshl_b32 s{sTRI}, s{sT3}, 18"); A(f"s_lshl_b32 s{sT1}, s{sT2}, 7"); A(f"s_add_u32 s{sTRI}, s{sTRI}, s{sT1}"); A(f"s_add_u32 s{sTRI}, s{sTRI}, {WS_OT}")
    A(f"v_mul_u32_u24 v{vTR+9}, {8*1792}, v7"); A(f"v_lshl_add_u32 v{vTR+9}, v6, 2, v{vTR+9}")
    A(f"s_mul_i32 s{sTRO}, s{sT2}, {64*1792}"); A(f"s_lshl_b32 s{sT1}, s{sT3}, 7"); A(f"s_add_u32 s{sTRO}, s{sTRO}, s{sT1}"); A(f"s_add_u32 s{sTRO}, s{sTRO}, 896")
    A(f"s_waitcnt vmcnt({4*DW + NTCH})")
    A(f"s_mov_b32 s{sT0}, 0x80808080")
    A.label("F_OP_CHK")
    A("v_and_b32 v15, 0x80808080, v15")
    A(f"v_cmp_ne_u32 vcc, s{sT0}, v15")
    A("s_cbranch_vccz F_OP_CHK_OK")
    A("s_sleep 4")
    A(f"buffer_load_dword v15, v14, {sr(SRD_DBG,4)}, 0 offen sc1")
    A("s_waitcnt vmcnt(0)")
    A("s_branch F_OP_CHK")
    A.label("F_OP_CHK_OK")
    A.label("F_S2_POLL")
    A("v_cmp_ne_u32 vcc, 1, v13")
    A("s_cbranch_vccz F_S2_OK")
    A("s_sleep 1")
    A(f"buffer_load_dword v13, v12, {sr(SRD_WS,4)}, s{sFA} offen sc1")
    A("s_waitcnt vmcnt(0)")
    A("s_branch F_S2_POLL")
    A.label("F_S2_OK")
    pst(A, "s2")
    for s_ in range(DC): cload(s_)
    A(f"buffer_load_dwordx4 {vr(vTR,4)}, v{vTR+8}, {sr(SRD_WS,4)}, s{sTRI} offen sc1"); vm.append("t")
    A(f"s_add_u32 s{sTRI}, s{sTRI}, 4096")
    A(f"buffer_load_dwordx4 {vr(vTR+4,4)}, v{vTR+8}, {sr(SRD_WS,4)}, s{sTRI} offen sc1"); vm.append("t")
    wait_for([("w", 0)])
    wreads(0, 0)
    NS = 32
    for s_ in range(NS):
        st = s_ & 1
        wait_for([("c", s_), ("w", s_+1)])
        A("s_waitcnt lgkmcnt(0)")
        rd = wread_ops(s_+1, st ^ 1) if s_ + 1 < NS else []
        mem = []
        if s_ + DC < NS: mem += [(g, ("c", s_ + DC)) for g in cload_ops(s_ + DC)]
        if s_ + DW < NS: mem += [(g, ("w", s_ + DW)) for g in wload_ops(s_ + DW)]
        mf = mfma_ops(s_, st)
        mi = 0
        for k in range(8):
            A(mf[k])
            for x in rd[2*k:2*k+2] if k < 4 else []: A(x)
            took = False
            while mi < len(mem) and (not took or not isinstance(mem[mi][0], str)):
                g, tag = mem[mi]; mi += 1
                put(A, g)
                if isinstance(g, str):
                    vm.append(tag); took = True
        while mi < len(mem):
            g, tag = mem[mi]; mi += 1
            put(A, g)
            if isinstance(g, str): vm.append(tag)
    pst(A, "gend")
    A(f"s_mov_b32 s{sT0}, 0x05040100"); A(f"s_mov_b32 s{sT1}, 0x07060302")
    for j in range(8): A(f"v_perm_b32 v{96+j}, v{vTR+4+j//2}, v{vTR+j//2}, s{sT0 + (j & 1)}")
    for j in range(8):
        if j % 2 == 0 and j: A(f"s_add_u32 s{sTRO}, s{sTRO}, {2*1792}")
        A(f"buffer_store_dword v{96+j}, v{vTR+9}, {sr(SRD_OUT,4)}, s{sTRO} offen offset:{(j&1)*1792}")
    A(f"v_add_u32 v6, s{sLB}, v{vL}")
    for t in range(4):
        for g in range(4): A(f"ds_write_b128 v6, {vr(vACC+16*t+4*g,4)} offset:{(t*4+g)*1024}")
    A("s_waitcnt lgkmcnt(0)"); A("s_barrier")
    A(f"s_lshl_b32 s{sT0}, s{sW}, 12")
    A(f"v_add_u32 v6, s{sT0}, v{vL}"); A(f"v_add_u32 v8, {2*WLDS}, v6")
    for src in range(4):
        for g in range(4):
            A(f"ds_read_b128 {vr(16+16*src+4*g,4)}, v{6 if src < 2 else 8} offset:{(src&1)*WLDS+g*1024}")
    A("v_and_b32 v7, 31, v5"); A(f"s_and_b32 s{sT0}, s{sW}, 1"); A(f"s_lshl_b32 s{sT0}, s{sT0}, 5")
    A(f"s_lshl_b32 s{sT1}, s{sQB}, 6"); A(f"s_add_u32 s{sT0}, s{sT0}, s{sT1}")
    A(f"v_add_u32 v7, s{sT0}, v7"); A("v_mul_u32_u24 v7, 1792, v7")
    A("v_lshrrev_b32 v9, 5, v5"); A("v_lshlrev_b32 v9, 3, v9"); A("v_add_u32 v7, v7, v9")
    A(f"s_lshr_b32 s{sT0}, s{sW}, 1"); A(f"s_lshl_b32 s{sT0}, s{sT0}, 6"); A(f"s_lshl_b32 s{sT1}, s{sMB}, 7")
    A(f"s_add_u32 s{sT0}, s{sT0}, s{sT1}")
    A("s_waitcnt lgkmcnt(0)")
    for r in range(16):
        A(f"v_add_f32 v{16+r}, v{16+r}, v{32+r}"); A(f"v_add_f32 v{48+r}, v{48+r}, v{64+r}")
    for r in range(16): A(f"v_add_f32 v{16+r}, v{16+r}, v{48+r}")
    for g in range(4):
        A(f"v_cvt_pk_bf16_f32 v{80+2*g}, v{16+4*g}, v{16+4*g+1}")
        A(f"v_cvt_pk_bf16_f32 v{80+2*g+1}, v{16+4*g+2}, v{16+4*g+3}")
        A(f"buffer_store_dwordx2 {vr(80+2*g,2)}, v7, {sr(SRD_OUT,4)}, s{sT0} offen offset:{16*g}")
    A.label("F_DONE")
    if PROF:
        A("s_waitcnt vmcnt(0)"); pstamp(A, 6); pflush(A, 7, 0, vt=100)
    A("s_endpgm")

def att_setup(A):
    A(f"v_and_b32 v{vFLA}, 63, v0")
    A(f"s_lshl_b32 s{sW8192}, s{sW}, 13")
    A(f"v_lshlrev_b32 v{vDMA0}, 4, v{vFLA}")
    A(f"v_add_u32 v{vDMA0}, s{sW8192}, v{vDMA0}")
    A(f"v_add_u32 v{vDMA1}, 4096, v{vDMA0}")
    if VDEFER:
        A(f"v_and_b32 v{vFLA}, 7, v{vFLA}"); A(f"v_lshlrev_b32 v{vFLA}, 3, v{vFLA}")
    else:
        A(f"v_and_b32 v{vFLA}, 15, v{vFLA}"); A(f"v_lshlrev_b32 v{vFLA}, 2, v{vFLA}")
    A(f"s_lshl_b32 s{sT0}, s{sI}, 1"); A(f"s_sub_u32 s{sT0}, 15, s{sT0}")
    A(f"s_cmp_eq_u32 s{sTYPE}, 0")
    A(f"s_cselect_b32 s{sN1}, 99, s{sT0}")
    A(f"s_cselect_b32 s{sT1}, s{sT0}, 0")
    A(f"s_mov_b32 s{sNT}, {NT}")
    A(f"s_lshl_b32 s{sT2}, s{sHD}, 20")
    A(f"s_add_u32 s{sKBASE}, s{sT2}, {WS_K}"); A(f"s_add_u32 s{sVBASE}, s{sT2}, {WS_V}")
    A(f"s_lshl_b32 s{sT1}, s{sT1}, 15")
    A(f"s_add_u32 s{sKOFF}, s{sKBASE}, s{sT1}"); A(f"s_add_u32 s{sVOFF}, s{sVBASE}, s{sT1}")
    A(f"s_mov_b32 s{sKPOS}, 0"); A(f"s_mov_b32 s{sVPOS}, 0")
    A(f"s_mov_b32 s{sADST}, 0"); A(f"s_mov_b32 s{sRD}, 0"); A(f"s_mov_b32 s{sFLUSH}, 0"); A(f"s_mov_b32 s{sPRE}, 0")
    A(f"s_mov_b32 s{sC}, {f32(CSCALE)}"); A(f"s_mov_b32 s{sTHR}, {f32(THR)}")
    A(f"s_and_b32 s{sREG2}, s{sLI}, 7"); A(f"s_add_u32 s{sREG2}, s{sREG2}, 3")
    A(f"s_lshl_b32 s{sT3}, s{sHD}, 3"); A(f"s_add_u32 s{sT3}, s{sT3}, s{sI}")
    A(f"s_mul_i32 s{sPART}, s{sT3}, {PART_STRIDE}"); A(f"s_add_u32 s{sPART}, s{sPART}, {WS_PART}")
    A(f"s_mov_b32 s{sKEND}, {OOB}"); A(f"s_mov_b32 s{sGOT}, 0")
    for x in PWORD(): A(x)
    A(f"s_add_u32 s{sPF}, s{sT1}, s{sFL}")
    A(f"s_sub_u32 s{sT0}, 15, s{sI}")
    A(f"s_lshl_b32 s{sT1}, s{sT0}, 16"); A(f"s_add_u32 s{sQL}, s{sT1}, s{sT2}"); A(f"s_add_u32 s{sQL}, s{sQL}, s{sW8192}")
    if WS_Q: A(f"s_add_u32 s{sQL}, s{sQL}, {WS_Q}")
    A(f"s_cmp_eq_u32 s{sTYPE}, 0"); A(f"s_cselect_b32 s{sT0}, s{sT0}, s{sI}")
    A(f"s_lshl_b32 s{sT0}, s{sT0}, 2"); A(f"s_add_u32 s{sT0}, s{sT0}, s{sW}")
    A(f"s_lshl_b32 s{sCTX}, s{sT0}, 18"); A(f"s_lshl_b32 s{sT0}, s{sHD}, 14")
    A(f"s_add_u32 s{sCTX}, s{sCTX}, s{sT0}"); A(f"s_add_u32 s{sCTX}, s{sCTX}, {WS_CTX}")

    A(f"s_add_u32 s{sT0}, s{sLI}, s{sW}"); A(f"s_and_b32 s{sT0}, s{sT0}, {CPSTEP-1}"); A(f"s_add_u32 s{sCPT}, s{sT0}, {17 - 4*CPSTEP}")
    A(f"s_lshl_b32 s{sCPO}, s{sTRK}, 2"); A(f"s_add_u32 s{sCPO}, s{sCPO}, s{sW}"); A(f"s_lshl_b32 s{sCPO}, s{sCPO}, 15")

def flag_load(v=0):
    return f"buffer_load_dword v{vFLG}, v{vFLA}, {sr(SRD_WS,4)}, s{sFL} offen offset:{4*v} sc1"

def first_tiles(A, uid):
    flat(A, dK())
    A(f"s_cmp_eq_u32 s{sTYPE}, 0"); A(f"s_cbranch_scc1 F_NOQL_{uid}")
    for sl in range(16):
        if sl % 4 == 0 and sl: A(f"s_add_u32 s{sQL}, s{sQL}, 4096")
        A(f"buffer_load_dwordx4 {ar(aQ+4*sl,4)}, v{vDMA0}, {sr(SRD_WS,4)}, s{sQL} offen offset:{(sl%4)*1024}")
    A.label(f"F_NOQL_{uid}")
    flat(A, dK())
    A(f"s_mov_b32 s{sPRE}, 1")

def early_check(A, uid, reload, younger=0):
    A(f"s_cmp_lg_u32 s{sPRE}, 0"); A(f"s_cbranch_scc1 F_EC_{uid}")
    A(f"s_cmp_eq_u32 s{sFAST}, 0"); A(f"s_cbranch_scc1 F_EC_{uid}")
    A(f"s_waitcnt vmcnt({younger})")
    A(f"v_cmp_ne_u32 vcc, 1, v{vFLG}")
    A(f"s_cbranch_vccz F_ECGO_{uid}")
    if reload: A(flag_load())
    A.label(f"F_EC_{uid}")
def early_go(A, uid):
    A.label(f"F_ECGO_{uid}")
    first_tiles(A, uid)
    A(f"s_branch F_EC_{uid}")

def attention(A):
    pst(A, "att")
    A(f"s_cmp_lg_u32 s{sPRE}, 0"); A("s_cbranch_scc1 F_S1_DONE")
    A.label("F_S1_POLL")
    A(flag_load())
    A("s_waitcnt vmcnt(0)")
    A(f"v_cmp_ne_u32 vcc, 1, v{vFLG}")
    A("s_cbranch_vccz F_S1_OK")
    A("s_sleep 2"); A("s_branch F_S1_POLL")
    A.label("F_S1_OK")
    A(f"s_cmp_lg_u32 s{sFAST}, 0"); A("s_cbranch_scc1 F_S1_F")
    A("buffer_inv sc1"); A("s_waitcnt vmcnt(0)")
    A.label("F_S1_F")
    first_tiles(A, "BLK")
    A.label("F_S1_DONE")
    pstamp(A, 3)
    A("v_and_b32 v14, 63, v0")
    A(f"v_lshlrev_b32 v{vL16}, 4, v14")
    A("v_and_b32 v13, 31, v14"); A("v_lshrrev_b32 v15, 5, v14"); A("v_lshlrev_b32 v15, 2, v15")
    A("v_sub_u32 v13, v13, v15"); A(f"s_lshl_b32 s{sT0}, s{sW}, 5"); A(f"v_add_u32 v13, s{sT0}, v13")
    A("v_cvt_f32_i32 v13, v13"); A("v_add_f32 v13, 0.5, v13"); A(f"v_mul_f32 v{vTHRB}, {f32(BIG)}, v13")
    A(f"v_mov_b32 v{vRD}, v{vL16}")
    A(f"v_mov_b32 v{vL}, 0")
    if FUSE3: outproj_setup(A)
    code_prefetch(A, "B", "F_LOOP", "F_END", 246, 247)
    if not VDEFER:
        A("s_waitcnt vmcnt(0) lgkmcnt(0)"); A("s_barrier")
        pst(A, "p0")
        for k in range(LA): A(f"ds_read_b128 {fr(k)}, v{vRD} offset:{QK_OFF[k]}")
        phase(A, qk_mfmas(0), [], dV() + dK(), "P0", prior=0)
        A("s_nop 15")
        rowmax(A, 0, vU0)
        A(f"v_mul_f32 v{vMC}, s{sC}, v{vU0}")
        flat(A, softmax_half(0, 0))
    else:
        flat(A, [wrap_add(sADST, SLOT, sT0)])
        A("s_waitcnt vmcnt(0) lgkmcnt(0)"); A("s_barrier")
        A(f"s_cmp_eq_u32 s{sTYPE}, 0"); A("s_cbranch_scc1 F_NOVP")
        flag_store(A, "VP", KVWORD(), vU0)
        A.label("F_NOVP")
        pst(A, "p0")
        for k in range(LA): A(f"ds_read_b128 {fr(k)}, v{vRD} offset:{QK_OFF[k]}")
        phase(A, qk_mfmas(0), [], dK(), "P0", extra={26: [flag_load(1)]}, prior=0)
        A("s_nop 15")
        rowmax(A, 0, vU0)
        A(f"v_mul_f32 v{vMC}, s{sC}, v{vU0}")
        flat(A, softmax_half(0, 0))
        A.label("F_V_POLL")
        A("s_waitcnt vmcnt(0)")
        A(f"v_cmp_ne_u32 vcc, 1, v{vFLG}")
        A("s_cbranch_vccz F_V_OK")
        A("s_sleep 1"); A(flag_load(1)); A("s_branch F_V_POLL")
        A.label("F_V_OK")
        A(f"s_cmp_lg_u32 s{sFAST}, 0"); A("s_cbranch_scc1 F_V_F")
        A("buffer_inv sc1"); A("s_waitcnt vmcnt(0)")
        A.label("F_V_F")
        A(f"s_mov_b32 s{sT3}, s{sADST}"); A(f"s_mov_b32 s{sADST}, {2*SLOT}")
        flat(A, dV())
        A(f"s_mov_b32 s{sADST}, s{sT3}")
        A(f"s_mov_b32 s{sFLUSH}, 1")
    A(f"s_mov_b32 s{sJ1}, 1")
    pst(A, "loop")
    A.label("F_LOOP")
    for b in (0, 1):
        nb = b ^ 1
        A(f"s_cmp_eq_u32 s{sJ1}, s{sN1}"); A(f"s_cbranch_scc1 F_QSW_{b}"); A.label(f"F_QSW_RET_{b}")
        phase(A, qk_mfmas(nb), softmax_half(b, 1), dV(), f"A{b}")
        A(f"v_add_f32 v{vTS0}, v{vTS0}, v{vTS1}")
        A(f"v_cmp_nge_f32 vcc, s{sTHR}, v{vTS0}")
        A(f"s_cbranch_vccnz F_RARE_{b}"); A.label(f"F_RARE_RET_{b}")
        A(f"v_add_f32 v{vL}, v{vL}, v{vTS0}")
        if b == 0:
            A(f"s_sub_u32 s{sT2}, s{sJ1}, 2"); A(f"s_cmp_eq_u32 s{sT2}, s{sN1}"); A(f"s_cbranch_scc1 F_PUB_0"); A.label(f"F_PUB_RET_0")
        A(f"s_cmp_ge_u32 s{sJ1}, {NT-2}"); A(f"s_cbranch_scc1 F_MASK_{nb}"); A.label(f"F_MASK_RET_{nb}")
        A(f"s_cmp_eq_u32 s{sJ1}, s{sN1}"); A(f"s_cbranch_scc1 F_INIT_{nb}"); A.label(f"F_INIT_RET_{nb}")
        phase(A, pv_mfmas(b), softmax_half(nb, 0), dK(), f"B{b}")
        A.label(f"F_HALF_END_{b}")
        A(f"s_cmp_eq_u32 s{sJ1}, s{sREG2}"); A(f"s_cbranch_scc1 F_REG2_{b}"); A.label(f"F_REG2_RET_{b}")
        if b == 1:
            A(f"s_cmp_eq_u32 s{sJ1}, 12"); A("s_cbranch_scc1 F_PFL"); A.label("F_PFL_RET")
        if b == 0:
            A(f"s_cmp_eq_u32 s{sJ1}, 13"); A("s_cbranch_scc1 F_PCK"); A.label("F_PCK_RET")
            A(f"s_cmp_eq_u32 s{sJ1}, 15"); A("s_cbranch_scc1 F_PFL2"); A.label("F_PFL2_RET")
        if CPT:
            A(f"s_cmp_eq_u32 s{sJ1}, s{sCPT}"); A(f"s_cbranch_scc1 F_CPT_{b}"); A.label(f"F_CPT_RET_{b}")
        if WOPF and b == 0:
            A(f"s_cmp_eq_u32 s{sJ1}, {WOPF}"); A("s_cbranch_scc1 F_WOPF"); A.label("F_WOPF_RET")
        if b == 0:
            A(f"s_cmp_eq_u32 s{sJ1}, s{sN1}"); A("s_cbranch_scc1 F_SPECIAL")
        A(f"s_add_u32 s{sJ1}, s{sJ1}, 1")
    A(f"s_cmp_lt_u32 s{sJ1}, {NT}"); A("s_cbranch_scc1 F_LOOP")
    A.label("F_TAILC")
    pstamp(A, 4)
    A("s_waitcnt vmcnt(0) lgkmcnt(0)"); A("s_barrier")
    A(f"s_cmp_eq_u32 s{sN1}, 15"); A("s_cbranch_scc1 F_PUB_2"); A.label("F_PUB_RET_2")
    flat(A, [wrap_add(sRD, SLOT, sT1)])
    A(f"v_add_u32 v{vRD}, s{sRD}, v{vL16}")
    for k in range(LA): A(f"ds_read_b128 {fr(k)}, v{vRD} offset:{PV_OFF[k]}")
    PSLOT = [3, 0, 1, 2]
    def part_chunk(c):
        g = [[f"s_add_u32 m0, s{sW8192}, {PSLOT[c]*SLOT}", f"s_add_u32 s{sT0}, s{sPART}, {c*SLOT}"]]
        for j in range(4):
            o = f" offset:{j*1024}" if j else ""
            g.append(f"buffer_load_dwordx4 v{vDMA0}, {sr(SRD_WS,4)}, s{sT0} offen{o} lds")
        g.append(["s_add_u32 m0, m0, 4096", "s_nop 0"])
        for j in range(4):
            o = f" offset:{j*1024}" if j else ""
            g.append(f"buffer_load_dwordx4 v{vDMA1}, {sr(SRD_WS,4)}, s{sT0} offen{o} lds")
        return g
    def part_stats():
        A(f"s_lshl_b32 s{sT1}, s{sW}, 10"); A(f"s_add_u32 s{sT1}, s{sT1}, s{sPART}"); A(f"s_add_u32 s{sT1}, s{sT1}, {4*SLOT}")
        A(f"buffer_load_dwordx4 {vr(48,4)}, v{vL16}, {sr(SRD_WS,4)}, s{sT1} offen")
    A(f"s_cmp_lg_u32 s{sTYPE}, 0"); A("s_cbranch_scc1 F_NOPRE")
    A(f"s_cmp_eq_u32 s{sFAST}, 0"); A("s_cbranch_scc1 F_NOPRE")
    A(f"s_cmp_lg_u32 s{sGOT}, 0"); A("s_cbranch_scc1 F_PRE2")
    A("v_cmp_ne_u32 vcc, 1, v248")
    A("s_cbranch_vccnz F_NOPRE")
    flat(A, part_chunk(0)); flat(A, part_chunk(1))
    A.label("F_PRE2")
    part_stats()
    flat(A, part_chunk(2)); flat(A, part_chunk(3))
    A(f"s_mov_b32 s{sGOT}, 2")
    A.label("F_NOPRE")
    pst(A, "pre")
    flat(A, softmax_half(0, 1))
    A(f"v_add_f32 v{vTS0}, v{vTS0}, v{vTS1}")
    A(f"v_cmp_nge_f32 vcc, s{sTHR}, v{vTS0}")
    A(f"s_cbranch_vccnz F_RARE_2"); A.label(f"F_RARE_RET_2")
    A(f"v_add_f32 v{vL}, v{vL}, v{vTS0}")
    mf = pv_mfmas(0)
    for k in range(32):
        if k % 4 == 0:
            issued = min(k - 1 + LA, 31)
            A(f"s_waitcnt lgkmcnt({max(issued - (k+3), 0)})")
        A(mf[k])
        if k + LA < 32: A(f"ds_read_b128 {fr(k+LA)}, v{vRD} offset:{PV_OFF[k+LA]}")
    pstamp(A, 5)
    A(f"s_cmp_lg_u32 s{sTYPE}, 0"); A("s_cbranch_scc1 F_EPI_B")
    A(f"s_cmp_eq_u32 s{sGOT}, 2"); A("s_cbranch_scc1 F_GOT")
    A.label("F_POLL")
    A(f"buffer_load_dword v248, v249, {sr(SRD_WS,4)}, s{sPF} offen sc1")
    A("s_waitcnt vmcnt(0)")
    A(f"v_cmp_ne_u32 vcc, 1, v248")
    A("s_cbranch_vccz F_POLL_DONE")
    A("s_sleep 2"); A("s_branch F_POLL")
    A.label("F_POLL_DONE")
    A(f"s_cmp_lg_u32 s{sFAST}, 0"); A("s_cbranch_scc1 F_POLL_F")
    A("buffer_inv sc1"); A("s_waitcnt vmcnt(0)")
    A.label("F_POLL_F")
    flat(A, part_chunk(0)); flat(A, part_chunk(1))
    part_stats()
    flat(A, part_chunk(2)); flat(A, part_chunk(3))
    A.label("F_GOT")
    A("s_waitcnt vmcnt(16)")
    pst(A, "got")
    A(f"v_add_u32 v25, {65536}, v{vDMA0}")
    def pread(n):
        c = n >> 2
        base, off = (vDMA0, PSLOT[c]*SLOT) if PSLOT[c] < 2 else (25, (PSLOT[c]-2)*SLOT)
        for h_ in range(2):
            A(f"ds_read_b128 {vr(128+8*(n&3)+4*h_,4)}, v{base} offset:{off + ((2*n+h_) & 7)*1024}")
    for n in range(3): pread(n)
    A(f"v_max_f32 v20, v{vMC}, v48")
    A(f"v_sub_f32 v21, v{vMC}, v20"); A("v_sub_f32 v22, v48, v20")
    A("v_exp_f32 v21, v21"); A("v_exp_f32 v22, v22")
    A("s_nop 0")
    A(f"v_mul_f32 v23, v21, v{vL}"); A("v_fmac_f32 v23, v22, v49")
    A("v_mov_b32 v24, v23"); A("s_nop 1"); A("v_permlane32_swap_b32 v24, v23"); A("s_nop 1")
    A("v_add_f32 v23, v23, v24")
    A("v_rcp_f32 v23, v23"); A("s_nop 0")
    A("v_mul_f32 v21, v21, v23"); A("v_mul_f32 v22, v22, v23")
    n = 0
    for dt in range(8):
        for t in range(2):
            tb = 32 + (n & 1)*8; tc = 128 + 8*(n & 3); ob = 80 + (n & 3)*4
            if n + 3 < 16:
                if n + 3 == 8: A(f"s_waitcnt vmcnt({8 + n})")
                if n + 3 == 12: A(f"s_waitcnt vmcnt({n})")
                pread(n + 3)
            for r in range(8): A(f"v_accvgpr_read_b32 v{tb+r}, a{aO+16*dt+8*t+r}")
            for r in range(8): A(f"v_mul_f32 v{tb+r}, v21, v{tb+r}")
            A(f"s_waitcnt lgkmcnt({2*min(3, 15-n)})")
            for r in range(8): A(f"v_fmac_f32 v{tb+r}, v22, v{tc+r}")
            for r in range(4): A(f"v_cvt_pk_bf16_f32 v{ob+r}, v{tb+2*r}, v{tb+2*r+1}")
            tot = (2*dt+t)*1024
            A(f"s_add_u32 s{sT0}, s{sCTX}, {tot & ~0xfff}")
            A(f"buffer_store_dwordx4 {vr(ob,4)}, v{vL16}, {sr(SRD_WS,4)}, s{sT0} offen offset:{tot & 0xfff}" + (" sc1" if FUSE3 else ""))
            n += 1
    if FUSE3: A("s_branch F_OUTPROJ")
    else:
        if PROF:
            A("s_waitcnt vmcnt(0)"); pstamp(A, 6); pflush(A, 7, 0)
        A("s_endpgm")
    A.label("F_EPI_B")
    pst(A, "got")
    A(f"v_mov_b32 v23, v{vL}"); A(f"v_mov_b32 v24, v{vL}"); A("s_nop 1"); A("v_permlane32_swap_b32 v24, v23"); A("s_nop 1")
    A("v_add_f32 v23, v23, v24")
    A("v_rcp_f32 v21, v23"); A("s_nop 7")
    n = 0
    for dt in range(8):
        for t in range(2):
            tb = 32 + (n & 1)*8; ob = 48 + (n & 3)*4
            for r in range(8): A(f"v_accvgpr_read_b32 v{tb+r}, a{aO+16*dt+8*t+r}")
            for r in range(8): A(f"v_mul_f32 v{tb+r}, v21, v{tb+r}")
            for r in range(4): A(f"v_cvt_pk_bf16_f32 v{ob+r}, v{tb+2*r}, v{tb+2*r+1}")
            tot = (2*dt+t)*1024
            A(f"s_add_u32 s{sT0}, s{sCTX}, {tot & ~0xfff}")
            A(f"buffer_store_dwordx4 {vr(ob,4)}, v{vL16}, {sr(SRD_WS,4)}, s{sT0} offen offset:{tot & 0xfff}" + (" sc1" if FUSE3 else ""))
            n += 1
    if FUSE3: outproj(A)
    else:
        if PROF:
            A("s_waitcnt vmcnt(0)"); pstamp(A, 6); pflush(A, 7, 0)
        A("s_endpgm")
    if CPT:
        for b in (0, 1):
            A.label(f"F_CPT_{b}")
            A(f"v_lshlrev_b32 v239, 3, v{vL16}")
            A(f"buffer_load_dword v238, v239, {sr(SRD_WO,4)}, s{sCPO} offen")
            A(f"s_add_u32 s{sCPO}, s{sCPO}, 8192")
            A(f"s_add_u32 s{sCPT}, s{sCPT}, {CPSTEP}")
            A(f"s_branch F_CPT_RET_{b}")
    for nm in ("F_PFL", "F_PFL2"):
        A.label(nm)
        if nm == "F_PFL" and os.environ.get("CPF2", "1") == "1": code_prefetch(A, "B2", "F_TAILC", "F_END", 238, 239, neg=True)
        A("v_mov_b32 v249, 0")
        A(f"buffer_load_dword v248, v249, {sr(SRD_WS,4)}, s{sPF} offen sc1")
        A(f"s_branch {nm}_RET")
    A.label("F_PCK")
    A(f"s_cmp_lg_u32 s{sTYPE}, 0"); A("s_cbranch_scc1 F_PCK_RET")
    A(f"s_cmp_eq_u32 s{sFAST}, 0"); A("s_cbranch_scc1 F_PCK_RET")
    A("s_waitcnt vmcnt(16)")
    A("v_cmp_ne_u32 vcc, 1, v248")
    A("s_cbranch_vccnz F_PCK_RET")
    A(f"s_mov_b32 s{sKEND}, s{sPART}"); A(f"s_mov_b32 s{sGOT}, 1")
    A("s_branch F_PCK_RET")
    A.label("F_SPECIAL")
    A(f"s_add_u32 s{sJ1}, s{sJ1}, 1")
    A("v_mov_b32 v244, v%d" % vSMC); A("v_mov_b32 v245, v%d" % vSL); A("v_mov_b32 v246, 0"); A("v_mov_b32 v247, 0")
    exA, exB = {}, {}
    for q in range(32):
        g = 2 + ((q * 3) // 2 if ALT else (q * 7) // 4)
        va = vDMA0 if (q & 7) < 4 else vDMA1
        op = [f"s_add_u32 s{sT2}, s{sPART}, {(q >> 3)*SLOT}",
              f"buffer_store_dwordx4 {ar(aO+4*q,4)}, v{va}, {sr(SRD_WS,4)}, s{sT2} offen offset:{(q&3)*1024}{PST}"]
        assert g < 32 + (8*(q >> 3) if ALT else 4*(q >> 2)) - 1
        (exA if g < 32 else exB).setdefault(g % 32 if g >= 32 else g, []).append(op)
    exA.setdefault(1, []).append([f"s_lshl_b32 s{sT2}, s{sW}, 10", f"s_add_u32 s{sT2}, s{sT2}, s{sPART}", f"s_add_u32 s{sT2}, s{sT2}, {4*SLOT}",
                                  f"buffer_store_dwordx4 v[244:247], v{vL16}, {sr(SRD_WS,4)}, s{sT2} offen{PST}"])
    nA = phase(A, qk_mfmas(0), softmax_half(1, 1), dV(), "SA", extra=exA, prior=8)
    A(f"v_add_f32 v{vTS0}, v{vTS0}, v{vTS1}")
    A(f"v_cmp_nge_f32 vcc, s{sTHR}, v{vTS0}")
    A(f"s_cbranch_vccnz F_RARE_3"); A.label(f"F_RARE_RET_3")
    A(f"v_add_f32 v{vL}, v{vL}, v{vTS0}")
    A(f"s_cmp_ge_u32 s{sJ1}, {NT-2}"); A("s_cbranch_scc1 F_MASK_2"); A.label("F_MASK_RET_2")
    phase(A, pv_mfmas(1, fresh=True), softmax_half(0, 0), dK(), "SB", extra=exB, prior=nA)
    A(f"s_mov_b32 s{sFLUSH}, 1")
    A("s_branch F_HALF_END_1")
    if WOPF:
        A.label("F_WOPF")
        A("s_load_dwordx2 s[46:47], s[0:1], 40")
        A(f"s_lshl_b32 s{sT0}, s{sLI}, 2"); A(f"s_add_u32 s{sT0}, s{sT0}, s{sW}"); A(f"s_mul_i32 s{sT0}, s{sT0}, {224*128}")
        A(f"v_lshlrev_b32 v{vU0}, 3, v{vL16}")
        A("s_waitcnt lgkmcnt(0)")
        srd(A, 28, "s46", "s47", 3670016)
        for k in range(4):
            if k == 3: A("s_mov_b64 exec, 0xffffffff")
            A(f"buffer_load_dword v249, v{vU0}, s[28:31], s{sT0} offen")
            A(f"s_add_u32 s{sT0}, s{sT0}, 8192")
        A("s_mov_b64 exec, -1")
        A("s_branch F_WOPF_RET")
    for b in (0, 1):
        A.label(f"F_REG2_{b}")
        A(f"s_cmp_lg_u32 s{sW}, 0"); A(f"s_cbranch_scc1 F_REG2_RET_{b}")
        A(f"s_add_u32 s{sT1}, s{sXCC}, 0x81"); A(f"v_mov_b32 v{vU0}, s{sT1}"); A(f"v_mov_b32 v{vU1}, 0")
        A("s_mov_b64 exec, 1")
        A(f"buffer_store_byte v{vU0}, v{vU1}, {sr(SRD_DBG,4)}, s{sPOS} offen sc1")
        A("s_mov_b64 exec, -1")
        A(f"s_branch F_REG2_RET_{b}")
    for uid in ("A0", "A1", "B0", "B1"):
        A.label(f"F_W49_{uid}")
        A(f"s_sub_u32 s{sFLUSH}, s{sFLUSH}, 1")
        A("s_waitcnt vmcnt(8)")
        A(f"s_branch F_WD_{uid}")
    for b in (0, 1):
        A.label(f"F_QSW_{b}")
        A("s_nop 7")
        for r in range(64): A(f"v_accvgpr_mov_b32 a{aQ+r}, a{aQ2+r}")
        A("s_nop 1")
        A(f"s_branch F_QSW_RET_{b}")
    for b in (0, 1, 2, 3):
        buf = b & 1
        A.label(f"F_RARE_{b}")
        A("s_nop 15")
        rowmax(A, buf, vU0)
        A(f"v_mul_f32 v{vU0}, s{sC}, v{vU0}")
        A(f"v_max_f32 v{vU0}, v{vU0}, v{vMC}")
        A(f"v_sub_f32 v{vU1}, v{vMC}, v{vU0}")
        A(f"v_exp_f32 v{vU1}, v{vU1}")
        A(f"v_mov_b32 v{vMC}, v{vU0}")
        A(f"v_mul_f32 v{vL}, v{vL}, v{vU1}")
        for r in (range(0, 128, 4) if b != 3 else []):
            for q in range(4): A(f"v_accvgpr_read_b32 v{vT+q}, a{aO+r+q}")
            for q in range(4): A(f"v_mul_f32 v{vT+q}, v{vU1}, v{vT+q}")
            for q in range(4): A(f"v_accvgpr_write_b32 a{aO+r+q}, v{vT+q}")
        flat(A, softmax_half(buf, 0)); flat(A, softmax_half(buf, 1))
        A(f"v_add_f32 v{vTS0}, v{vTS0}, v{vTS1}")
        A("s_nop 1")
        A(f"s_branch F_RARE_RET_{b}")
    for nb in (0, 1):
        A.label(f"F_MASK_{nb}")
        A("s_nop 15")
        add = 0 if nb == 1 else 64
        for st in range(2):
            for r in range(16):
                c = add + 32*st + 8*(r >> 2) + (r & 3)
                t = vT + (r & 3)
                A(f"v_add_f32 v{t}, {f32(-c*BIG)}, v{vTHRB}" if c else f"v_mov_b32 v{t}, v{vTHRB}")
                A(f"v_min_f32 v{S[nb]+16*st+r}, v{S[nb]+16*st+r}, v{t}")
        A(f"s_branch F_MASK_RET_{nb}")
        if nb == 0:
            A.label("F_MASK_2")
            A("s_nop 15")
            for st in range(2):
                for r in range(16):
                    c = add + 32*st + 8*(r >> 2) + (r & 3)
                    t = vT + (r & 3)
                    A(f"v_add_f32 v{t}, {f32(-c*BIG)}, v{vTHRB}" if c else f"v_mov_b32 v{t}, v{vTHRB}")
                    A(f"v_min_f32 v{S[nb]+16*st+r}, v{S[nb]+16*st+r}, v{t}")
            A("s_branch F_MASK_RET_2")
        A.label(f"F_INIT_{nb}")
        A("s_nop 15")
        A(f"v_mov_b32 v{vSMC}, v{vMC}"); A(f"v_mov_b32 v{vSL}, v{vL}")
        rowmax(A, nb, vU0)
        A(f"v_mul_f32 v{vMC}, s{sC}, v{vU0}")
        A(f"v_mov_b32 v{vL}, 0")
        A(f"s_branch F_INIT_RET_{nb}")
    for b in (0, 2):
        A.label(f"F_PUB_{b}")
        flag_store(A, f"PUB{b}", PWORD(), vU0)
        A(f"s_branch F_PUB_RET_{b}")

def gen():
    A = Asm()
    A(kernel_header(NAME))
    A("s_cmp_ge_u32 s2, 256"); A("s_cbranch_scc1 F_END")
    pstamp(A, 0)
    A("s_load_dwordx4 s[64:67], s[0:1], 0")
    A("s_load_dwordx4 s[68:71], s[0:1], 16")
    A("s_load_dwordx2 s[72:73], s[0:1], 32")
    A("s_load_dwordx4 s[76:79], s[0:1], 104")
    A("s_load_dwordx4 s[44:47], s[0:1], 48")
    A("s_load_dwordx4 s[80:83], s[0:1], 64")
    A("s_load_dwordx4 s[96:99], s[0:1], 80")
    A("v_lshrrev_b32 v26, 6, v0")
    A("v_and_b32 v27, 63, v0")
    A(f"v_readfirstlane_b32 s{sW}, v26")
    A(f"s_getreg_b32 s{sXCC}, hwreg(HW_REG_XCC_ID, 0, 4)")
    A(f"s_and_b32 s{sX}, s2, 7"); A(f"s_lshr_b32 s{sLI}, s2, 3")
    A(f"s_and_b32 s{sT0}, s{sLI}, 1"); A(f"s_lshl_b32 s{sHD}, s{sX}, 1"); A(f"s_add_u32 s{sHD}, s{sHD}, s{sT0}")
    A(f"s_lshr_b32 s{sMT}, s{sLI}, 2")
    A(f"s_bfe_u32 s{sISV}, s{sLI}, 0x10001")
    sWM, sWN = sT4, sT5
    A(f"s_lshr_b32 s{sWM}, s{sW}, 1"); A(f"s_and_b32 s{sWN}, s{sW}, 1")
    A("v_lshrrev_b32 v28, 3, v27"); A("v_and_b32 v29, 7, v27"); A("v_lshrrev_b32 v30, 4, v27")
    A(f"s_lshl_b32 s{sT0}, s{sW}, 5")
    A(f"v_add_u32 v28, s{sT0}, v28")
    for j in range(4):
        A(f"v_add_u32 v31, {4*j}, v30"); A("v_and_b32 v31, 7, v31"); A("v_xor_b32 v31, v29, v31"); A("v_lshlrev_b32 v31, 4, v31")
        A(f"v_add_u32 v32, {8*j}, v28")
        A(f"v_add_u32 v34, {16*(j&1) + 8*(j>>1)}, v28")
        A(f"v_lshlrev_b32 v33, 11, v34"); A(f"v_add_u32 v33, v33, v31")
        A(f"v_subrev_u32 v{vOFFC+j}, {j*1024}, v33")
        A(f"v_mul_u32_u24 v33, 896, v32"); A(f"v_add_u32 v33, v33, v31")
        A(f"v_subrev_u32 v{vOFFX+j}, {j*1024}, v33")
    A("v_lshrrev_b32 v31, 2, v27"); A("v_and_b32 v31, 7, v31"); A("v_lshlrev_b32 v31, 13, v31")
    A("v_lshrrev_b32 v32, 5, v27"); A("v_lshlrev_b32 v32, 6, v32")
    A("v_and_b32 v33, 3, v27"); A("v_lshlrev_b32 v33, 4, v33")
    A("v_add3_u32 v31, v31, v32, v33")
    A(f"s_lshl_b32 s{sT0}, s{sW}, 7")
    A(f"v_add_u32 v31, s{sT0}, v31")
    for j in range(4): A(f"v_add_u32 v{vOFFW+j}, {j*65536 - j*1024}, v31")
    A("v_and_b32 v31, 31, v27"); A("v_lshlrev_b32 v31, 7, v31")
    A("v_lshrrev_b32 v32, 5, v27")
    A("v_lshrrev_b32 v33, 1, v27"); A("v_and_b32 v33, 7, v33")
    for s in range(4):
        A(f"v_add_u32 v34, {2*s}, v32"); A("v_xor_b32 v34, v34, v33"); A("v_lshlrev_b32 v34, 4, v34")
        A(f"v_add_u32 v{vBC+s}, v31, v34")
    A("v_lshlrev_b32 v31, 10, v32")
    A("v_lshrrev_b32 v33, 2, v27"); A("v_and_b32 v33, 3, v33"); A("v_lshlrev_b32 v33, 6, v33"); A("v_add_u32 v31, v31, v33")
    A("v_lshrrev_b32 v33, 4, v27"); A("v_and_b32 v33, 1, v33"); A("v_lshlrev_b32 v33, 5, v33"); A("v_add_u32 v31, v31, v33")
    A("v_and_b32 v33, 3, v27"); A("v_lshlrev_b32 v33, 3, v33")
    A(f"s_lshl_b32 s{sT0}, s{sW}, 12")
    A(f"v_add3_u32 v{vBWQ}, v31, v33, s{sT0}")
    A("v_lshrrev_b32 v31, 1, v27"); A("v_and_b32 v32, 3, v31"); A("v_lshrrev_b32 v33, 2, v31"); A("v_and_b32 v33, 1, v33")
    A("v_lshl_add_u32 v32, v33, 3, v32")
    A("v_lshlrev_b32 v32, 13, v32")
    A("v_lshrrev_b32 v33, 5, v27"); A("v_lshlrev_b32 v33, 6, v33")
    A("v_and_b32 v34, 1, v27"); A("v_lshlrev_b32 v34, 5, v34")
    A("v_add3_u32 v32, v32, v33, v34")
    A("v_lshrrev_b32 v33, 4, v27"); A("v_and_b32 v33, 1, v33"); A("v_lshlrev_b32 v33, 4, v33")
    A(f"s_lshl_b32 s{sT0}, s{sW}, 7")
    A(f"v_add3_u32 v32, v32, v33, s{sT0}")
    for j in range(4): A(f"v_add_u32 v{vOFFW16+j}, {(16*(j>>1)+4*(j&1))*8192 - j*1024}, v32")
    A("v_and_b32 v31, 15, v27"); A("v_lshrrev_b32 v32, 1, v31"); A("v_lshlrev_b32 v31, 7, v31"); A("v_lshrrev_b32 v33, 4, v27")
    for s2 in range(2):
        A(f"v_add_u32 v34, {4*s2}, v33"); A("v_xor_b32 v34, v34, v32"); A("v_lshlrev_b32 v34, 4, v34")
        A(f"v_add_u32 v{vBC16+s2}, v31, v34")
    A("v_lshrrev_b32 v31, 5, v27"); A("v_lshlrev_b32 v31, 11, v31")
    A("v_lshrrev_b32 v32, 4, v27"); A("v_and_b32 v32, 1, v32"); A("v_lshlrev_b32 v32, 7, v32")
    A("v_lshrrev_b32 v33, 2, v27"); A("v_and_b32 v33, 3, v33"); A("v_lshlrev_b32 v33, 5, v33")
    A("v_add3_u32 v31, v31, v32, v33")
    A("v_and_b32 v32, 3, v27"); A("v_lshlrev_b32 v32, 3, v32")
    A(f"s_lshl_b32 s{sT0}, s{sWN}, 13")
    A(f"v_add3_u32 v{vBW16}, v31, v32, s{sT0}")
    A("v_lshrrev_b32 v31, 3, v27"); A("v_and_b32 v31, 1, v31"); A("v_lshlrev_b32 v31, 8, v31")
    A("v_and_b32 v32, 7, v27"); A("v_lshlrev_b32 v32, 4, v32")
    A("v_lshrrev_b32 v33, 4, v27"); A("v_lshlrev_b32 v33, 9, v33")
    A(f"v_add3_u32 v{vST16}, v31, v32, v33")
    A(f"v_mov_b32 v{vZ}, 0")
    A("s_waitcnt lgkmcnt(0)")
    if PROF and "p1" in PNAMES:
        A("s_mov_b64 s[94:95], s[98:99]"); A("s_mov_b64 s[96:97], s[100:101]")
    pst(A, "p1")
    srd(A, SRD_X, "s64", "s65", 1835008)
    srd(A, SRD_C, "s66", "s67", 4194304)
    srd(A, SRD_WQ, "s68", "s69", 3670016)
    A(f"s_cmp_eq_u32 s{sISV}, 0")
    A(f"s_cselect_b32 s{sT0}, s70, s72"); A(f"s_cselect_b32 s{sT1}, s71, s73")
    srd(A, SRD_W, f"s{sT0}", f"s{sT1}", 8388608)
    srd(A, SRD_DBG, "s76", "s77", 256)
    srd(A, SRD_WS, "s78", "s79", WS_BYTES)
    A("s_cmp_lt_u32 s2, 224")
    A(f"s_cselect_b32 s{sT2}, 1835008, 0"); A(f"s_cselect_b32 s{sT3}, 3584, 0"); A(f"s_cselect_b32 s3, {WS_BYTES}, 0")
    srd(A, SRD_BSK, "s82", "s83", f"s{sT3}")
    srd(A, SRD_BV, "s80", "s81", f"s{sT2}")
    srd(A, SRD_BK, "s46", "s47", f"s{sT2}")
    srd(A, SRD_BQ, "s44", "s45", f"s{sT2}")
    srd(A, SRD_BWS, "s78", "s79", "s3")
    A(f"s_lshl_b32 s{sW4096}, s{sW}, 12")
    A(f"s_lshl_b32 s{sSOFFC}, s{sMT}, 19")
    A(f"s_lshl_b32 s{sSOFFW}, s{sHD}, 9")
    A(f"s_lshl_b32 s{sOUT}, s{sHD}, 20")
    A(f"s_lshl_b32 s{sT0}, s{sMT}, 17"); A(f"s_add_u32 s{sOUT}, s{sOUT}, s{sT0}")
    A(f"s_lshl_b32 s{sT0}, s{sWM}, 16"); A(f"s_add_u32 s{sOUT}, s{sOUT}, s{sT0}")
    A(f"s_add_u32 s{sT1}, s{sISV}, 13")
    A(f"s_lshl_b32 s{sT0}, s{sWN}, s{sT1}"); A(f"s_add_u32 s{sOUT}, s{sOUT}, s{sT0}")
    A(f"s_lshl_b32 s{sT0}, {WS_K}, s{sISV}")
    A(f"s_add_u32 s{sOUT}, s{sOUT}, s{sT0}")
    A(f"s_mov_b32 s{sOWLO}, 0")
    A(f"s_lshl_b32 s{sOC}, s{sWM}, 14"); A(f"s_add_u32 s{sOC}, s{sOC}, {UNIT}")
    A(f"s_mov_b32 s{sOWHI}, {3*UNIT}")
    A(f"s_mov_b32 s{sDST}, 0")
    A(f"s_and_b32 s{sXCC}, s{sXCC}, 7")
    A(f"s_lshl_b32 s{sFL}, s{sHD}, 7"); A(f"s_add_u32 s{sFL}, s{sFL}, {WS_FLAG}")
    A(f"s_lshr_b32 s{sT1}, s{sLI}, 1"); A(f"s_lshl_b32 s{sPOS}, s{sHD}, 4"); A(f"s_add_u32 s{sPOS}, s{sPOS}, s{sT1}")
    A(f"v_lshlrev_b32 v{vGM+1}, 2, v27")
    A(f"s_sub_u32 s{sT0}, 15, s{sI}"); A(f"s_cmp_eq_u32 s{sTYPE}, 0"); A(f"s_cselect_b32 s{sT0}, s{sT0}, s{sI}")
    A(f"s_lshl_b32 s{sT0}, s{sT0}, 7"); A(f"s_lshl_b32 s{sT1}, s{sHD}, 2"); A(f"s_add_u32 s{sFL2}, s{sT0}, s{sT1}")
    A(f"s_add_u32 s{sFL2}, s{sFL2}, {WS_FLAG2}")
    A(f"s_cmp_lg_u32 s{sW}, 0"); A("s_cbranch_scc1 F_NOZERO")
    A("s_mov_b64 exec, 1")
    A(f"buffer_store_dword v{vZ}, v{vZ}, {sr(SRD_WS,4)}, s{sFL2} offen sc1")
    for w in (KVWORD(), PWORD()):
        for x in w: A(x)
        A(f"s_add_u32 s{sT1}, s{sT1}, s{sFL}")
        A(f"buffer_store_dword v{vZ}, v{vZ}, {sr(SRD_WS,4)}, s{sT1} offen sc1")
    A("s_mov_b64 exec, -1")
    A.label("F_NOZERO")
    dW = lambda: dma_unit(SRD_W, vOFFW16, sSOFFW, 262144) + [f"s_and_b32 s{sSOFFW}, s{sSOFFW}, 0x7fffff"]
    dC0 = lambda: dma_unit(SRD_C, vOFFC, sSOFFC, 262144)
    dC1 = lambda: dma_unit(SRD_C, vOFFC, sSOFFC, -(262144-128)) + [f"s_bitset0_b32 s{sSOFFC}, 11"]
    if os.environ.get("KVROT", "1") == "1":
        A(f"s_lshl_b32 s{sT0}, s{sX}, 8"); A(f"s_add_u32 s{sSOFFC}, s{sSOFFC}, s{sT0}")
        A(f"s_lshl_b32 s{sT0}, s{sX}, 20"); A(f"s_add_u32 s{sSOFFW}, s{sSOFFW}, s{sT0}")
    NPRO = int(os.environ.get("NPRO", "6"))
    kvseq = lambda q: [dW, dC0, dC1, dW][q % 4]()
    for q in range(NPRO): flat(A, kvseq(q))
    pst(A, "p2")
    A(f"s_sub_u32 s{sT0}, 15, s{sI}")
    A(f"s_cmp_eq_u32 s{sTYPE}, 0"); A(f"s_cselect_b32 s{sT0}, s{sT0}, s{sI}")
    A(f"s_mul_i32 s{sXB}, s{sT0}, {128*896}")
    A(f"s_lshl_b32 s{sWQB}, s{sHD}, 9")
    A(f"s_cmp_eq_u32 s{sX}, 7"); A(f"s_cselect_b32 s{sQPOS}, 3, s{sX}")
    A(f"s_lshl_b32 s{sT3}, s{sQPOS}, 7"); A(f"s_add_u32 s{sSOFFX}, s{sXB}, s{sT3}")
    A(f"s_lshl_b32 s{sT3}, s{sQPOS}, 19"); A(f"s_add_u32 s{sSOFFWQ}, s{sWQB}, s{sT3}")
    A(f"s_mul_hi_u32 s{sT4}, s2, 0x24924925")
    A(f"s_mul_i32 s{sT5}, s{sT4}, 7"); A(f"s_sub_u32 s{sT5}, s2, s{sT5}")
    A(f"s_lshl_b32 s{sT4}, s{sT4}, 6"); A(f"s_lshl_b32 s{sT5}, s{sT5}, 6")
    B1L, B1C = k0.b1_body(vB1, SRD_BQ, SRD_BK, SRD_BV, SRD_BSK, SRD_BWS, sT4, sT5, sBT)
    B1A = [x for x in B1L if not x.startswith("buffer_")]
    B1M = [x for x in B1L if x.startswith("buffer_")]
    for x in B1A: A(x)
    A("s_mov_b64 s[26:27], s[96:97]"); A("s_mov_b64 s[78:79], s[98:99]")
    code_prefetch(A, "A", "F_K", "F_ATT", 26, 27)
    pst(A, "p3")
    for s in range(2): A(f"v_add_u32 v{vCA+s}, s{sOC}, v{vBC16+s}")
    A(f"v_add_u32 v{vWLO}, s{sOWLO}, v{vBW16}"); A(f"v_add_u32 v{vWHI}, s{sOWHI}, v{vBW16}")
    A(f"s_waitcnt vmcnt({4*(NPRO-3) + (1 if CODEPF else 0)})"); A("s_barrier")
    pstamp(A, 1)
    for x in kv_reads(0, vCA+0, vWLO): A(x)
    A(f"s_mov_b32 s{sCNT}, 0")
    A(f"s_and_b32 s{sFAST}, s{sLI}, 3"); A(f"s_add_u32 s{sFAST}, s{sFAST}, 1"); A(f"s_lshl_b32 s{sT0}, s{sW}, 6"); A(f"s_add_u32 s{sFAST}, s{sFAST}, s{sT0}")
    if KPT:
        A(f"s_and_b32 s{sDX}, s{sW}, 1"); A(f"s_add_u32 s{sDX}, s{sDX}, 4")
        A(f"s_lshl_b32 s{sDW}, s{sHD}, 20"); A(f"s_lshl_b32 s{sT0}, s{sMT}, 17"); A(f"s_add_u32 s{sDW}, s{sDW}, s{sT0}")
        A(f"s_lshl_b32 s{sT0}, s{sW}, 15"); A(f"s_add_u32 s{sDW}, s{sDW}, s{sT0}")
        A(f"s_lshl_b32 s{sT0}, {WS_K}, s{sISV}"); A(f"s_add_u32 s{sDW}, s{sDW}, s{sT0}")
    dWQ = lambda: dma_unit(SRD_WQ, vOFFW, sSOFFWQ, 262144)
    dX = lambda: dma_unit(SRD_X, vOFFX, sSOFFX, 128)
    def qseq(seq):
        k = (seq - 64) % 3
        if k == 0: return dWQ()
        if k == 1: return dX()
        g = dWQ() + [[f"s_add_u32 s{sQPOS}, s{sQPOS}, 1", f"s_cmp_eq_u32 s{sQPOS}, 7",
                      f"s_cselect_b32 s{sSOFFX}, s{sXB}, s{sSOFFX}", f"s_cselect_b32 s{sSOFFWQ}, s{sWQB}, s{sSOFFWQ}",
                      f"s_cselect_b32 s{sQPOS}, 0, s{sQPOS}"]]
        return g
    A(f"s_cmp_lg_u32 s{sISV}, 0"); A("s_cbranch_scc1 F_V")
    B1S = [([x[0], x[1] + " sc1"] if isinstance(x, list) else x) for x in B1C]
    for isv in (0, 1):
        tag = "V" if isv else "K"
        A.label(f"F_{tag}")
        R = list(range(NPRO, 13)); n0 = min((len(R) + 1) // 2 + 1, 11 - NPRO)
        b0 = sum((kvseq(q) for q in R[:n0]), []); b1 = sum((kvseq(q) for q in R[n0:]), [])
        kv_stage(A, isv, [b0, [], b1, []], kv_reads(0, vCA+0, vWLO), wa=4*(NPRO-4), wb=4*(R[n0-1]-6), fresh=True, ex1=B1M)
        h5 = len(B1S) // 5
        kv_stage(A, isv, [dC0(), dC1(), dW(), dW()], kv_reads(0, vCA+0, vWLO), ex1=B1S[:h5], wa=20+len(B1M), wb=8)
        kv_stage(A, isv, [dC0(), dC1(), dW(), dW()], kv_reads(0, vCA+0, vWLO), B1S[h5:3*h5])
        kv_stage(A, isv, [dC0(), dC1(), dW(), dW()], kv_reads(0, vCA+0, vWLO), B1S[3*h5:])
        A.label(f"F_{tag}_LOOP")
        kv_stage(A, isv, [dC0(), dC1(), dW(), dW()], kv_reads(0, vCA+0, vWLO))
        A(f"s_cmp_eq_u32 s{sCNT}, s{sFAST}"); A(f"s_cbranch_scc1 F_REG_{tag}"); A.label(f"F_REG_RET_{tag}")
        A(f"s_add_u32 s{sCNT}, s{sCNT}, 1"); A(f"s_cmp_lt_u32 s{sCNT}, 9"); A(f"s_cbranch_scc1 F_{tag}_LOOP")
        if os.environ.get("CPF2", "1") == "1": code_prefetch(A, "A2" + tag, f"F_QP_{tag}", "F_LOOP" if isv else "F_V", 26, 27)
        kv_stage(A, isv, [dC0(), dC1(), dW(), qseq(64)], kv_reads(0, vCA+0, vWLO))
        kv_stage(A, isv, [qseq(65), qseq(66), qseq(67), qseq(68)], kv_reads(0, vCA+0, vWLO))
        kv_stage(A, isv, [qseq(69), qseq(70), qseq(71), qseq(72)], q_reads(0, 0, 0))
        A.label(f"F_QP_{tag}")
        pst(A, "kvend")
        ep1, ep2 = kv_epilogue_groups(isv)
        def hook1(A, nb, tag=tag): pass
        KAB = 128 if isv else 192
        def hook2(A, nb):
            hook1(A, nb)
            if nb == 4:
                conv_scalars(A); kern_loads(A, KAB)
            if nb == 5:
                for x in reg_load(): A(x)
        ny = q_pass(A, qseq, ["s_nop 7"] + (v_compact_groups() if (isv and VDEFER) else ep1 + ep2), hook2)
        pst(A, "qend")
        A(f"s_waitcnt vmcnt({ny})")
        reg_check(A, tag, vTMP)
        pstamp(A, 2)
        xq_loads(A)
        q_exchange(A, isv)
        pst(A, "qx")
        kern_move(A, KAB)
        if not (isv and VDEFER): A("s_waitcnt vmcnt(0)")
        A(f"s_mov_b32 s{sVOUT}, s{sOUT}")
        srd(A, SRD_VS, f"s{SRD_WS}", f"s{SRD_WS+1}", WS_BYTES if isv else 0)
        A("s_waitcnt lgkmcnt(0)"); A("s_barrier")
        if not (isv and VDEFER): flag_store(A, "KV" + tag, KVWORD(), vTMP)
        q_exchange_read(A, isv)
        if isv == 0: A("s_branch F_MID")
    A.label("F_MID")
    for k in range(NV0): put(A, vstore(k))
    att_setup(A)
    A(f"s_cmp_eq_u32 s{sCR}, 99"); A("s_cbranch_scc1 F_NOCONV")
    conv(A, "X")
    A("s_branch F_ATT")
    early_go(A, "C30"); early_go(A, "C60"); early_go(A, "C90")
    A.label("F_NOCONV")
    for k in (range(NV0, 32) if VDEFER else []): put(A, vstore(k))
    A("s_nop 1")
    for r in range(128): A(f"v_accvgpr_write_b32 a{aO+r}, 0")
    A("s_waitcnt lgkmcnt(0)"); A("s_barrier")
    A.label("F_ATT")
    attention(A)
    if KPT:
        for tag in ("K", "V"):
            A.label(f"F_KPT_{tag}")
            A(f"v_lshlrev_b32 v26, 5, v{vGM+1}")
            A(f"buffer_load_dword v27, v26, {sr(SRD_WS,4)}, s{sDW} offen{PTF}")
            A(f"s_add_u32 s{sDW}, s{sDW}, 8192"); A(f"s_add_u32 s{sDX}, s{sDX}, 2")
            A(f"s_branch F_KPT_RET_{tag}")
    for tag in ("K", "V"):
        A.label(f"F_REG_{tag}")
        A(f"s_add_u32 s{sT1}, s{sXCC}, 1"); A(f"v_mov_b32 v{vGM}, s{sT1}")
        A("s_mov_b64 exec, 1")
        A(f"buffer_store_byte v{vGM}, v{vZ}, {sr(SRD_DBG,4)}, s{sPOS} offen sc1")
        A("s_mov_b64 exec, -1")
        A(f"s_branch F_REG_RET_{tag}")
    A.label("F_END")
    A("s_endpgm")
    d = kernel_desc(NAME, 512, 102, 256).replace(".end_amdhsa_kernel", "  .amdhsa_float_denorm_mode_32 3\n.end_amdhsa_kernel")
    return A.text(), d, f"; @launch kernel={NAME} grid=(256,1,1) block=(256,1,1) lds={LDS}"
```

```python
from asmlib import *
NAME = "k0_bprep_kernel"
SRD_Q, SRD_K, SRD_V, SRD_SK, SRD_WS = 8, 12, 16, 20, 24

def b1_body(vb, srdq, srdk, srdv, srdsk, srdws, sS0, sD0, sT):
    L = []
    vo, vsk_o, vst = vb, vb+1, vb+2
    K = vb+4
    V = vb+15
    Q = vb+23
    SK = vb+32
    F = vb+36
    L.append(f"v_and_b32 v{F}, 31, v0")
    L.append(f"v_lshrrev_b32 v{F+1}, 5, v0")
    L.append(f"v_lshlrev_b32 v{F+1}, 3, v{F+1}")
    L.append(f"v_add_u32 v{F+1}, s{sS0}, v{F+1}")
    L.append(f"v_lshlrev_b32 v{F+2}, 1, v{F}")
    L.append(f"v_add_u32 v{F+2}, s{sD0}, v{F+2}")
    L.append(f"v_mul_u32_u24 v{vo}, 896, v{F+1}")
    L.append(f"v_lshl_add_u32 v{vo}, v{F+2}, 1, v{vo}")
    L.append(f"v_lshlrev_b32 v{vsk_o}, 3, v{F+2}")
    L.append(f"v_sub_u32 v{F+3}, 2040, v{F+1}")
    L.append(f"v_lshlrev_b32 v{F+3}, 1, v{F+3}")
    L.append(f"v_lshl_add_u32 v{vst}, v{F+2}, 12, v{F+3}")
    L.append(f"v_subrev_u32 v{F+3}, {3*896}, v{vo}")
    for j in range(3):
        L.append(f"v_add_u32 v{F+4+j}, {j*896}, v{F+3}")
    for j in range(3):
        L.append(f"buffer_load_dword v{K+j}, v{F+4+j}, {sr(srdk,4)}, 0 offen")
    for j in range(8):
        if j < 5: L.append(f"buffer_load_dword v{K+3+j}, v{vo}, {sr(srdk,4)}, 0 offen offset:{j*896}")
        else:     L.append(f"buffer_load_dword v{K+3+j}, v{vo}, {sr(srdk,4)}, s{sT} offen offset:{(j-4)*896}")
    L.append(f"buffer_load_dwordx4 {vr(SK,4)}, v{vsk_o}, {sr(srdsk,4)}, 0 offen")
    for (R, sd) in ((V, srdv), (Q, srdq)):
        for j in range(8):
            if j < 5: L.append(f"buffer_load_dword v{R+j}, v{vo}, {sr(sd,4)}, 0 offen offset:{j*896}")
            else:     L.append(f"buffer_load_dword v{R+j}, v{vo}, {sr(sd,4)}, s{sT} offen offset:{(j-4)*896}")
    L.insert(0, f"s_mov_b32 s{sT}, {4*896}")
    C = []
    W = F
    for c in range(2):
        for jj in range(2):
            C.append(f"v_lshlrev_b32 v{W+c*4+2*jj}, 16, v{SK+2*c+jj}")
            C.append(f"v_and_b32 v{W+c*4+2*jj+1}, 0xffff0000, v{SK+2*c+jj}")
    KF = F+8
    T = F+20
    O = F+28
    for c in range(2):
        for j in range(11):
            if c == 0: C.append(f"v_lshlrev_b32 v{KF+j}, 16, v{K+j}")
            else:      C.append(f"v_and_b32 v{KF+j}, 0xffff0000, v{K+j}")
        for rp in range(4):
            r0, r1 = 2*rp, 2*rp+1
            a0, a1, p0, p1, pk = T, T+1, T+2, T+3, T+4
            C.append(f"v_mul_f32 v{a0}, v{KF+r0}, v{W+c*4+3}"); C.append(f"v_mul_f32 v{a1}, v{KF+r1}, v{W+c*4+3}")
            C.append(f"v_cvt_pk_bf16_f32 v{pk}, v{a0}, v{a1}")
            C.append(f"v_lshlrev_b32 v{a0}, 16, v{pk}"); C.append(f"v_and_b32 v{a1}, 0xffff0000, v{pk}")
            for t in range(1, 4):
                C.append(f"v_mul_f32 v{p0}, v{KF+r0+t}, v{W+c*4+3-t}"); C.append(f"v_mul_f32 v{p1}, v{KF+r1+t}, v{W+c*4+3-t}")
                C.append(f"v_cvt_pk_bf16_f32 v{pk}, v{p0}, v{p1}")
                C.append(f"v_lshlrev_b32 v{p0}, 16, v{pk}"); C.append(f"v_and_b32 v{p1}, 0xffff0000, v{pk}")
                C.append(f"v_add_f32 v{a0}, v{a0}, v{p0}"); C.append(f"v_add_f32 v{a1}, v{a1}, v{p1}")
                C.append(f"v_cvt_pk_bf16_f32 v{pk}, v{a0}, v{a1}")
                C.append(f"v_lshlrev_b32 v{a0}, 16, v{pk}"); C.append(f"v_and_b32 v{a1}, 0xffff0000, v{pk}")
            if c == 0:
                C.append(f"v_lshlrev_b32 v{p0}, 16, v{V+r0}"); C.append(f"v_lshlrev_b32 v{p1}, 16, v{V+r1}")
            else:
                C.append(f"v_and_b32 v{p0}, 0xffff0000, v{V+r0}"); C.append(f"v_and_b32 v{p1}, 0xffff0000, v{V+r1}")
            C.append(f"v_mul_f32 v{a0}, v{a0}, v{p0}"); C.append(f"v_mul_f32 v{a1}, v{a1}, v{p1}")
            C.append(f"v_cvt_pk_bf16_f32 v{O+4*c+3-rp}, v{a1}, v{a0}")
        C.append([f"s_mov_b32 s{sT+1}, {WS_KVT + c*4096}",
                  f"buffer_store_dwordx4 {vr(O+4*c,4)}, v{vst}, {sr(srdws,4)}, s{sT+1} offen"])
    QO = KF + 1 if (KF + 1) % 2 == 0 else KF
    C.append(f"s_mov_b32 s{sT+2}, 0x05040100")
    C.append(f"s_mov_b32 s{sT+3}, 0x07060302")
    for c in range(2):
        for rp in range(4):
            r0, r1 = 2*rp, 2*rp+1
            C.append(f"v_perm_b32 v{QO+4*c+3-rp}, v{Q+r0}, v{Q+r1}, s{sT+2+c}")
        C.append([f"s_mov_b32 s{sT+1}, {WS_QT + c*4096}",
                  f"buffer_store_dwordx4 {vr(QO+4*c,4)}, v{vst}, {sr(srdws,4)}, s{sT+1} offen"])
    return L, C

def gen():
    A = Asm()
    A(kernel_header(NAME))
    A("s_cmp_ge_u32 s2, 224"); A("s_cbranch_scc1 K0_END")
    A("s_load_dwordx4 s[32:35], s[0:1], 48")
    A("s_load_dwordx4 s[36:39], s[0:1], 64")
    A("s_load_dwordx2 s[40:41], s[0:1], 112")
    A("s_mul_hi_u32 s28, s2, 0x24924925")
    A("s_mul_i32 s29, s28, 7"); A("s_sub_u32 s29, s2, s29")
    A("s_lshl_b32 s28, s28, 6"); A("s_lshl_b32 s29, s29, 6")
    A("s_waitcnt lgkmcnt(0)")
    srd(A, SRD_Q, "s32", "s33", 1835008); srd(A, SRD_K, "s34", "s35", 1835008)
    srd(A, SRD_V, "s36", "s37", 1835008); srd(A, SRD_SK, "s38", "s39", 3584)
    srd(A, SRD_WS, "s40", "s41", WS_BYTES)
    L, C = b1_body(4, SRD_Q, SRD_K, SRD_V, SRD_SK, SRD_WS, 28, 29, 44)
    for x in L: A(x)
    A("s_waitcnt vmcnt(0)")
    for g in C:
        if isinstance(g, list):
            for x in g: A(x)
        else: A(g)
    A.label("K0_END")
    A("s_endpgm")
    d = kernel_desc(NAME, 80, 56, 80).replace(".end_amdhsa_kernel", "  .amdhsa_float_denorm_mode_32 3\n.end_amdhsa_kernel")
    return A.text(), d, f"; @launch kernel={NAME} grid=(224,1,1) block=(256,1,1) lds=0"
```

```python
import sys, os
sys.path.insert(0, "gen")
import f12
KN = "concat_heads__compressed_kv_cla__ssm_conv_h3__prompt_kernel"
body, desc, launch = f12.gen()
body = body.replace(f12.NAME, KN); desc = desc.replace(f12.NAME, KN)
hdr = open("concat_heads__compressed_kv_cla__ssm_conv_h3__prompt.s.ref").read().split("; Override launch geometry")[0]
s = hdr + "; Generated by a hand-written Python generator (fused persistent kernel: KV projection -> Q projection -> long conv -> causal attention -> output projection)\n"
s += f"; @launch grid=(256,1,1) block=(256,1,1) lds={f12.LDS}\n"
s += '.amdgcn_target "amdgcn-amd-amdhsa--gfx950"\n.text\n' + body + '.section .rodata,"a"\n.p2align 6\n' + desc
open(sys.argv[1], "w").write(s)
```

```python
from asmlib import *
import k0, struct

NAME = "f12_kernel"
LDS = 163840
UNIT = 16384
SLOT = 32768
OOB = 0x40000000

SRD_WS, SRD_DBG = 4, 8
sW, sX, sLI, sHD, sMT, sISV, sXCC, sFAST = 12, 13, 14, 15, 16, 17, 18, 19
sI, sTYPE = sMT, sISV
sT0, sT1, sT2, sT3, sT4, sT5 = 22, 23, 24, 25, 26, 27
SRD_C, SRD_W, SRD_X, SRD_WQ = 28, 32, 36, 40
SRD_BQ, SRD_BK, SRD_BV, SRD_BSK, SRD_BWS = 44, 48, 52, 56, 60
sOWLO, sOC, sOWHI, sDST, sSOFFC, sSOFFW, sW4096, sCNT = 64, 65, 66, 67, 68, 69, 70, 71
sSOFFX, sSOFFWQ, sOUT, sQPOS, sXB, sWQB, sDX, sDW = 72, 73, 74, 75, 76, 77, 78, 79
sBT = 80
sN1, sNT, sKOFF, sKBASE, sKPOS, sVOFF, sVBASE, sVPOS = 52, 53, 54, 55, 56, 57, 58, 59
sADST, sRD, sW8192, sJ1, sC, sPART, sCTX, sFLUSH = 60, 61, 62, 63, 64, 65, 66, 67
sTHR, sPRE, sQL, sREG2, sPF, sGOT, sCPT, sCPO, sCPI, sKEND = 68, 69, 71, 72, 73, 74, 75, 76, 77, 78
sCR, sTRK = 82, 83
sFL2 = 3
sFL = 20
sPOS = 21
NT = 17
PNAMES = os.environ.get("PNAMES", "start,kv0,chk,s1,tail,pv,end").split(",")
def pst(A, name):
    if not PROF or name not in PNAMES: return
    idx = PNAMES.index(name)
    A("s_memtime s[98:99]"); A("s_memrealtime s[100:101]"); A("s_waitcnt lgkmcnt(0)")
    A(f"s_mov_b32 s{84+2*idx}, s98"); A(f"s_mov_b32 s{85+2*idx}, s100")
def pstamp(A, idx):
    pst(A, ["start","kv0","chk","s1","tail","pv","end"][idx])
def pflush(A, n, kidx, vt=16):
    if not PROF: return
    A(f"v_lshrrev_b32 v{vt}, 6, v0"); A(f"v_lshlrev_b32 v{vt}, 6, v{vt}")
    A("s_lshl_b32 s98, s2, 8"); A(f"s_add_u32 s98, s98, {WS_PROF + kidx*(1<<20)}")
    for i in range(n):
        A(f"v_mov_b32 v{vt+2}, s{84+2*i}"); A(f"v_mov_b32 v{vt+3}, s{85+2*i}")
        A(f"buffer_store_dwordx2 v[{vt+2}:{vt+3}], v{vt}, {sr(SRD_WS,4)}, s98 offen offset:{8*i}")
        A("s_nop 1")

vOFFC, vOFFW, vOFFX = 1, 5, 9
vBC, vBWQ = 13, 17
vCA, vWLO, vWHI = 19, 21, 22
vGM = 24
vZ = 23
FR16 = [(32, 64), (96, 128)]
vOFFW16, vBC16, vBW16, vST16 = 232, 236, 238, 239
vB1 = 160
vQACC = 96
vTMP = 224
vWR, NWR = 32, 12
vXF = 80
vQA = 88
QLA = 6

def wrap_add(reg, inc, t):
    return [f"s_add_u32 s{t}, s{reg}, {inc}", f"s_sub_u32 s{reg}, s{t}, {LDS}", f"s_cselect_b32 s{reg}, s{t}, s{reg}"]

QNT = os.environ.get('QNT', '')
KVST = os.environ.get('KVST', ' sc1')
PST = os.environ.get('PST', ' sc1')
KNT = os.environ.get('KNT', '')
def dma_unit(srd_, voff, soff_reg, soff_inc):
    fl = QNT if srd_ in (SRD_X, SRD_WQ) else KNT
    g = [[f"s_add_u32 m0, s{sDST}, s{sW4096}"] + wrap_add(sDST, UNIT, sT0)]
    for j in range(4):
        o = f" offset:{j*1024}" if j else ""
        g.append(f"buffer_load_dwordx4 v{voff+j}, {sr(srd_,4)}, s{soff_reg} offen{o}{fl} lds")
    if soff_inc > 0: g.append(f"s_add_u32 s{soff_reg}, s{soff_reg}, {soff_inc}")
    else: g.append(f"s_sub_u32 s{soff_reg}, s{soff_reg}, {-soff_inc}")
    return g

def flatten(gs):
    out = []
    for g in gs:
        if isinstance(g, (list, tuple)):
            i = 0
            while i < len(g):
                if (g[i].startswith("s_sub_u32") or g[i].startswith("s_cmp")) and i + 1 < len(g) and g[i+1].startswith("s_cselect"):
                    j = i + 1
                    while j < len(g) and g[j].startswith("s_cselect"): j += 1
                    out.append(list(g[i:j])); i = j
                elif (g[i].startswith("s_mov_b32") or g[i].startswith("s_add_u32")) and i + 1 < len(g) and g[i+1].startswith("buffer_store"):
                    out.append(list(g[i:i+2])); i += 2
                else:
                    out.append(g[i]); i += 1
        else: out.append(g)
    return out

def put(A, f):
    if isinstance(f, (list, tuple)):
        for x in f: A(x)
    else: A(f)
def flat(A, gs):
    for g in gs: put(A, g)

def kv_reads(setn, caddr, waddr):
    cb, wb = FR16[setn]
    r = []
    for t in range(8):
        r.append(f"ds_read_b128 {vr(cb+4*t,4)}, v{caddr} offset:{t*2048}")
        off = (t >> 2) * 4096 + (t & 3) * 256
        r.append(f"ds_read_b64_tr_b16 {vr(wb+4*t,2)}, v{waddr} offset:{off}")
        r.append(f"ds_read_b64_tr_b16 {vr(wb+4*t+2,2)}, v{waddr} offset:{off+1024}")
    return r

def kv_mfmas(setn, isv, fresh=False):
    cb, wb = FR16[setn]
    m = []
    for i in range(8):
        for j in range(8):
            acc = ar((i*8+j)*4, 4)
            W = vr(wb+4*i, 4); C = vr(cb+4*j, 4)
            c = "0" if fresh else acc
            if isv: m.append(f"v_mfma_f32_16x16x32_bf16 {acc}, {C}, {W}, {c}")
            else:   m.append(f"v_mfma_f32_16x16x32_bf16 {acc}, {W}, {C}, {c}")
    return m

def kv_stage(A, isv, dmas, last_reads, extra=None, last_late=False, wa=20, wb=16, fresh=False, ex0=None, ex1=None):
    def emit(mf, reads, other, ex, late=False):
        n = len(mf)
        gaps = [[] for _ in mf]
        other = flatten(other)
        r0 = n - 2*len(reads) if late else 0
        for i, f in enumerate(reads): gaps[min(r0 + 2*i, n-1)].append(f)
        for i, f in enumerate(other): gaps[2*((i * (n//2)) // max(len(other), 1)) + 1].append(f)
        for i, f in enumerate(ex): gaps[(i * n) // len(ex)].append(f)
        for m_, gl in zip(mf, gaps):
            A(m_)
            for f in gl: put(A, f)
    ex2 = [[], []]
    if extra:
        n = len(extra); ex2 = [extra[:n//2], extra[n//2:]]
    if ex0: ex2 = [ex0, []]
    if ex1: ex2 = [[], ex1]
    A("s_waitcnt lgkmcnt(0)"); A(f"s_waitcnt vmcnt({wa})"); A("s_barrier")
    f = kv_reads(1, vCA+1, vWHI)
    upd = [wrap_add(sOWLO, 4*UNIT, sT1), wrap_add(sOC, 4*UNIT, sT1), wrap_add(sOWHI, 4*UNIT, sT1)]
    upd += [f"v_add_u32 v{vCA+0}, s{sOC}, v{vBC16+0}", f"v_add_u32 v{vWLO}, s{sOWLO}, v{vBW16}"]
    upd2 = [f"v_add_u32 v{vCA+1}, s{sOC}, v{vBC16+1}", f"v_add_u32 v{vWHI}, s{sOWHI}, v{vBW16}"]
    emit(kv_mfmas(0, isv, fresh), f, dmas[0] + dmas[1] + upd, ex2[0])
    A("s_waitcnt lgkmcnt(0)"); A(f"s_waitcnt vmcnt({wb})"); A("s_barrier")
    emit(kv_mfmas(1, isv), last_reads, dmas[2] + dmas[3] + upd2, ex2[1], late=last_late)

def kv_epilogue_groups(isv):
    items = []
    for p in range(4):
        for o in range(8):
            if isv:
                a = 2*p; b = o
                t0 = (b*8+a)*4; t1 = (b*8+a+1)*4
                off = (b & 1)*128 + (b >> 1)*4096 + (p & 1)*2048 + (p >> 1)*32768
            else:
                b = 2*p; a = o
                t0 = (b*8+a)*4; t1 = ((b+1)*8+a)*4
                off = (a & 1)*128 + (a >> 1)*16384 + p*2048
            items.append((t0, t1, off))
    hi = [x for x in items if x[0] >= 128]; lo = [x for x in items if x[0] < 128]
    assert len(hi) == 16 and all(x[1] >= 128 for x in hi) and all(x[1] < 128 for x in lo)
    halves = []
    n = 0
    for part in (hi, lo):
        g = []
        for (t0, t1, off) in part:
            tb = vTMP
            ob = 240 + (n & 3)*4
            for r in range(4): g.append(f"v_accvgpr_read_b32 v{tb+r}, a{t0+r}")
            for r in range(4): g.append(f"v_accvgpr_read_b32 v{tb+4+r}, a{t1+r}")
            for r in range(4): g.append(f"v_cvt_pk_bf16_f32 v{ob+r}, v{tb+2*r}, v{tb+2*r+1}")
            g.append([f"s_add_u32 s{sT2}, s{sOUT}, {off & ~0xfff}",
                      f"buffer_store_dwordx4 {vr(ob,4)}, v{vST16}, {sr(SRD_WS,4)}, s{sT2} offen offset:{off & 0xfff}{KVST}"])
            n += 1
        halves.append(g)
    return halves


SRD_VS, sVOUT = 36, 79
def v_compact_groups():
    g = []
    for k in range(32):
        ob = 240 + (k & 3)*4
        for r in range(8): g.append(f"v_accvgpr_read_b32 v{vTMP+r}, a{8*k+r}")
        for r in range(4): g.append(f"v_cvt_pk_bf16_f32 v{ob+r}, v{vTMP+2*r}, v{vTMP+2*r+1}")
        for r in range(4): g.append(f"v_accvgpr_write_b32 a{4*k+r}, v{ob+r}")
    return g
def vstore(k):
    b, p = k >> 2, k & 3
    off = (b & 1)*128 + (b >> 1)*4096 + (p & 1)*2048 + (p >> 1)*32768
    return [f"s_add_u32 s{sT2}, s{sVOUT}, {off & ~0xfff}",
            f"buffer_store_dwordx4 {ar(4*k,4)}, v{vST16}, {sr(SRD_VS,4)}, s{sT2} offen offset:{off & 0xfff}{KVST}"]
VDEFER = os.environ.get('VDEFER', '0') == '1'
NV0 = 12 if VDEFER else 0

def uoff(seq): return (seq % 10) * UNIT

FR = [(32, 48), (64, 80)]
def q_reads(setn, t, sig):
    cb, wb = FR[setn]
    r = []
    xo = uoff(65 + 3*t)
    wo = uoff(64 + 3*t + (2 if sig >= 2 else 0))
    sp = sig & 1
    xa = 26 + 2*setn; wa = 27 + 2*setn
    r.append(f"v_add_u32 v{xa}, {xo}, v{vBC+sig}")
    r.append(f"v_add_u32 v{wa}, {wo}, v{vBWQ}")
    for tt in range(4):
        r.append(f"ds_read_b128 {vr(cb+4*tt,4)}, v{xa} offset:{tt*4096}")
        if tt < 2:
            off = tt * 512 + sp * 2048
            r.append(f"ds_read_b64_tr_b16 {vr(wb+4*tt,2)}, v{wa} offset:{off}")
            r.append(f"ds_read_b64_tr_b16 {vr(wb+4*tt+2,2)}, v{wa} offset:{off+256}")
    return r
def q_mfmas(setn, first):
    cb, wb = FR[setn]
    m = []
    for i in range(2):
        for tt in range(4):
            acc = vr(vQACC + (i*4+tt)*16, 16)
            c = "0" if first else acc
            m.append(f"v_mfma_f32_32x32x16_bf16 {acc}, {vr(wb+4*i,4)}, {vr(cb+4*tt,4)}, {c}")
    return m

def q_pass(A, qseq, ep, hook):
    vm = []
    for sq in range(60, 73): vm += [sq]*4
    nblk = 28
    per_blk = (len(ep) + nblk - 3) // (nblk - 2)
    epi = 0; nextseq = 73; setn = 0
    for t in range(7):
        for sig in range(4):
            A("s_waitcnt lgkmcnt(0)")
            if sig == 3 and t < 6:
                need = 69 + 3*t
                idx = max(i for i, x in enumerate(vm) if isinstance(x, int) and x <= need)
                A(f"s_waitcnt vmcnt({min(len(vm) - 1 - idx, 63)})"); A("s_barrier")
                hook(A, t)
                mark = len(vm)
            if sig < 3: f = q_reads(setn ^ 1, t, sig+1)
            elif t < 6: f = q_reads(setn ^ 1, t+1, 0)
            else: f = []
            d = []; dtag = None
            if sig in (0, 1, 3) and nextseq <= 84 and not (t == 0 and sig == 1):
                d = flatten(qseq(nextseq)); dtag = nextseq; nextseq += 1
            e = ep[epi: epi + per_blk]; epi += per_blk
            mf = q_mfmas(setn, t == 0 and sig == 0)
            gaps = [[] for _ in mf]
            for i, x in enumerate(f): gaps[(i * 5) // max(len(f), 1)].append(x)
            for i, x in enumerate(d): gaps[(i * 8) // max(len(d), 1)].append(x)
            for i, x in enumerate(e): gaps[(i * 8) // max(len(e), 1)].append(x)
            for m_, gl in zip(mf, gaps):
                A(m_)
                for g in gl:
                    for x in (g if isinstance(g, list) else [g]):
                        A(x)
                        if x.startswith("buffer_"): vm.append(dtag if " lds" in x else "st")
            setn ^= 1
    assert epi >= len(ep)
    return len(vm) - mark

def q_exchange(A, isv):
    A("s_nop 7")
    if not VDEFER: A("s_waitcnt vmcnt(4)")
    A("s_barrier")
    if not VDEFER: flag_store(A, "KVE%d" % isv, KVWORD(), vTMP)
    A("v_and_b32 v26, 63, v0"); A("v_lshlrev_b32 v26, 4, v26")
    A(f"v_add_u32 v27, s{sW4096}, v26")
    if not isv:
        A(f"s_sub_u32 s{sT0}, 15, s{sI}"); A(f"s_lshl_b32 s{sT0}, s{sT0}, 16"); A(f"s_lshl_b32 s{sT1}, s{sHD}, 20")
        A(f"s_add_u32 s{sT3}, s{sT0}, s{sT1}")
        if WS_Q: A(f"s_add_u32 s{sT3}, s{sT3}, {WS_Q}")
    n = 0
    for tt in range(4):
        for i in range(2):
            base = vQACC + (i*4+tt)*16
            for t in range(2):
                ob = 32 + (n & 7)*4
                for r in range(4):
                    A(f"v_cvt_pk_bf16_f32 v{ob+r}, v{base+8*t+2*r}, v{base+8*t+2*r+1}")
                off = tt*16384 + i*2048 + t*1024
                A(f"ds_write_b128 v27, {vr(ob,4)} offset:{off}")
                if not isv:
                    if (i, t) == (0, 0) and tt: A(f"s_add_u32 s{sT3}, s{sT3}, 16384")
                    A(f"buffer_store_dwordx4 {vr(ob,4)}, v27, {sr(SRD_WS,4)}, s{sT3} offen offset:{i*2048+t*1024}{KVST}")
                n += 1
def q_exchange_read(A, isv):
    A(f"s_lshl_b32 s{sT0}, s{sW}, 14")
    A("v_and_b32 v26, 63, v0"); A("v_lshlrev_b32 v26, 4, v26"); A(f"v_add_u32 v26, s{sT0}, v26")
    ab = aQ2 if isv else aQ
    for sl in range(16): A(f"ds_read_b128 {ar(ab+4*sl,4)}, v26 offset:{sl*1024}")

LA = int(os.environ.get("LA", "8"))
PART_STRIDE = 4*33*1024
vDMA0, vDMA1, vL16, vRD, vRDN = 252, 253, 3, 4, 5
vFLG, vFLA = 250, 251
vMC, vL, vTS0, vTS1, vTHRB, vSMC, vSL = 6, 7, 8, 9, 10, 11, 12
vU0, vU1, vU2 = 13, 14, 15
S = [16, 48]
P = [80, 96]
vT = 112
vFR = 128
aO, aQ, aQ2 = 0, 128, 192
def f32(x): return "0x%08x" % struct.unpack("<I", struct.pack("<f", x))[0]
CSCALE = 1.4426950408889634 / 16.0
BIG = 2.0**64
THR = 2.0**24

def dma_tile(off, base, pos, end=None):
    g = []
    g.append([f"s_add_u32 m0, s{sADST}, s{sW8192}", "s_nop 0"])
    for j in range(4):
        o = f" offset:{j*1024}" if j else ""
        g.append(f"buffer_load_dwordx4 v{vDMA0}, {sr(SRD_WS,4)}, s{off} offen{o} lds")
    g.append([f"s_add_u32 m0, m0, 4096"] + wrap_add(sADST, SLOT, sT0))
    for j in range(4):
        o = f" offset:{j*1024}" if j else ""
        g.append(f"buffer_load_dwordx4 v{vDMA1}, {sr(SRD_WS,4)}, s{off} offen{o} lds")
    g.append([f"s_add_u32 s{pos}, s{pos}, 1", f"s_add_u32 s{off}, s{off}, {SLOT}",
              f"s_cmp_eq_u32 s{pos}, s{sN1}", f"s_cselect_b32 s{off}, s{base}, s{off}"])
    if end is None: g.append([f"s_cmp_ge_u32 s{pos}, s{sNT}", f"s_cselect_b32 s{off}, {OOB}, s{off}"])
    else: g.append([f"s_cmp_eq_u32 s{pos}, s{sNT}", f"s_cselect_b32 s{off}, s{end}, s{off}"])
    return g
dK = lambda: dma_tile(sKOFF, sKBASE, sKPOS, sKEND)
dV = lambda: dma_tile(sVOFF, sVBASE, sVPOS)

def softmax_half(buf, st):
    sb = S[buf] + 16*st; pb = P[buf] + 8*st
    ts = vTS0 if st == 0 else vTS1
    f = []
    for g in range(4):
        tb = vT + (g & 1)*4 + st*8
        for r in range(4): f.append(f"v_fma_f32 v{tb+r}, v{sb+4*g+r}, s{sC}, -v{vMC}")
        for r in range(4): f.append(f"v_exp_f32 v{tb+r}, v{tb+r}")
        if g == 0: f.append(f"v_add_f32 v{ts}, v{tb}, v{tb+1}")
        else:
            f.append(f"v_add_f32 v{ts}, v{ts}, v{tb}"); f.append(f"v_add_f32 v{ts}, v{ts}, v{tb+1}")
        f.append(f"v_cvt_pk_bf16_f32 v{pb+2*g}, v{tb}, v{tb+1}")
        f.append(f"v_add_f32 v{ts}, v{ts}, v{tb+2}"); f.append(f"v_add_f32 v{ts}, v{ts}, v{tb+3}")
        f.append(f"v_cvt_pk_bf16_f32 v{pb+2*g+1}, v{tb+2}, v{tb+3}")
    return f
def fr(k): return vr(vFR + 4*(k % 16), 4)
ALT = os.environ.get("ALT", "0") == "1"
QK_ORDER = [(k & 1, k >> 1) for k in range(32)] if ALT else [(k >> 4, k & 15) for k in range(32)]
PV_ORDER = [(2*(k >> 3) + (k & 1), (k >> 1) & 3) for k in range(32)] if ALT else [(k >> 2, k & 3) for k in range(32)]
QK_OFF = [(st*16+sl)*1024 for st, sl in QK_ORDER]
PV_OFF = [(dt*4+ks)*1024 for dt, ks in PV_ORDER]
def qk_mfmas(buf):
    m = []
    for k, (st, sl) in enumerate(QK_ORDER):
        acc = vr(S[buf] + 16*st, 16)
        c = "0" if sl == 0 else acc
        m.append(f"v_mfma_f32_32x32x16_bf16 {acc}, {fr(k)}, {ar(aQ+4*sl,4)}, {c}")
    return m
def pv_mfmas(buf, fresh=False):
    m = []
    for k, (dt, ks) in enumerate(PV_ORDER):
        acc = ar(aO + 16*dt, 16)
        c = "0" if (fresh and ks == 0) else acc
        m.append(f"v_mfma_f32_32x32x16_bf16 {acc}, {fr(k)}, {vr(P[buf]+4*ks,4)}, {c}")
    return m

PSCHED = os.environ.get("PSCHED", "1")
def icost(x):
    if isinstance(x, (list, tuple)): return sum(icost(y) for y in x)
    if x.endswith(":"): return 0
    if x.startswith("v_exp"): return 8
    if x.startswith("buffer_"): return int(os.environ.get("VMC", "16"))
    return 4
def phase(A, mf, valu, dma, uid, extra=None, prior=None):
    isqk = 'a[128:131]' in mf[0]
    OFF = QK_OFF if isqk else PV_OFF
    NOFF = QK_OFF if (uid == 'P0' or not isqk) else PV_OFF
    if ALT and not isqk: valu = ['s_nop 7'] + valu
    gaps = [[] for _ in range(32)]
    lim = 32 - LA - 1
    if PSCHED == "0":
        nd = len(dma)
        for i, d in enumerate(dma): gaps[(i * lim) // nd].append(d)
        gaps[1].append(wrap_add(sRD, SLOT, sT1))
        gaps[3].append(f"v_add_u32 v{vRDN}, s{sRD}, v{vL16}")
    else:
        misc = flatten([x for x in flatten([wrap_add(sRD, SLOT, sT1)])] + [f"v_add_u32 v{vRDN}, s{sRD}, v{vL16}"] + dma)
        misc = [x for x in misc if x != "s_nop 0"]
        tot = sum(icost(x) for x in misc); acc = 0; g = 0; last_m0 = -1
        for x in misc:
            g = max(g, min(lim - 1, (acc * lim) // tot))
            if isinstance(x, str) and x.startswith("buffer_") and g <= last_m0: g = last_m0 + 1
            gaps[g].append(x); acc += icost(x)
            if isinstance(x, str) and " m0," in x: last_m0 = g
    if extra:
        for g, ops in extra.items(): gaps[g] += ops
    def nvm(gl):
        n = 0
        for g in gl:
            for x in (g if isinstance(g, (list, tuple)) else [g]):
                if x.startswith("buffer_"): n += 1
        return n
    before = sum(nvm(gaps[k]) for k in range(32 - LA))
    total = sum(nvm(gaps[k]) for k in range(32))
    for k in range(32):
        kk = k + LA
        if kk < 32:
            gaps[k].insert(0, f"ds_read_b128 {fr(kk)}, v{vRD} offset:{OFF[kk]}")
        else:
            x = []
            if kk == 32:
                if prior is None:
                    x += [f"s_cmp_lg_u32 s{sFLUSH}, 0", f"s_cbranch_scc1 F_W49_{uid}", "s_waitcnt vmcnt(16)", f"F_WD_{uid}:", "s_barrier"]
                else:
                    x += [f"s_waitcnt vmcnt({min(prior + before, 63)})", "s_barrier"]
            x.append(f"ds_read_b128 {fr(kk)}, v{vRDN} offset:{NOFF[kk-32]}")
            gaps[k].insert(0, x)
    nv = len(valu)
    if PSCHED == "0":
        for i, v in enumerate(valu): gaps[(i * 31) // max(nv,1)].append(v)
    elif nv:
        base = [icost(gaps[k]) + (4 if (k + 1) % 4 == 0 else 0) for k in range(32)]
        target = (sum(base) + sum(icost(v) for v in valu)) / 32.0
        vi = 0; carry = 0.0
        for k in range(32):
            room = target - base[k] + carry
            while vi < nv and (icost(valu[vi]) <= room + 2 or k == 31):
                gaps[k].append(valu[vi]); room -= icost(valu[vi]); vi += 1
            carry = room
    for k in range(32):
        if k % 4 == 0: A(f"s_waitcnt lgkmcnt({LA-4})")
        A(mf[k])
        for g in gaps[k]: put(A, g)
    A(f"v_mov_b32 v{vRD}, v{vRDN}")
    return total

def rowmax(A, buf, dst):
    sb = S[buf]
    A(f"v_max3_f32 v{dst}, v{sb}, v{sb+1}, v{sb+2}")
    for r in range(3, 31, 2): A(f"v_max3_f32 v{dst}, v{dst}, v{sb+r}, v{sb+r+1}")
    A(f"v_max_f32 v{dst}, v{dst}, v{sb+31}")
    A(f"v_mov_b32 v{vU2}, v{dst}")
    A("s_nop 1")
    A(f"v_permlane32_swap_b32 v{vU2}, v{dst}")
    A("s_nop 1")
    A(f"v_max_f32 v{dst}, v{dst}, v{vU2}")


def rank_li(A, dst, excl_type, t):
    A(f"s_sub_u32 s{dst}, s{sLI}, 4")
    A(f"s_lshr_b32 s{t}, s{sLI}, 2"); A(f"s_lshl_b32 s{t}, s{t}, 1")
    A(f"s_and_b32 s{t+1}, s{sLI}, 1"); A(f"s_add_u32 s{t}, s{t}, s{t+1}")
    A(f"s_cmp_eq_u32 s{sTYPE}, {excl_type}"); A(f"s_cselect_b32 s{t}, 99, s{t}")
    A(f"s_cmp_lt_u32 s{sLI}, 8"); A(f"s_cselect_b32 s{dst}, s{t}, s{dst}")


CODEPF = os.environ.get("CODEPF", "1") == "1"
def code_prefetch(A, uid, start, end, va, vd, neg=False):
    if not CODEPF: return
    A(".p2align 3")
    A(f"s_getpc_b64 s[{sT2}:{sT3}]")
    A.label(f"F_PC_{uid}")
    if neg:
        A(f"s_sub_u32 s{sT2}, s{sT2}, F_PC_{uid}-{start}"); A(f"s_subb_u32 s{sT3}, s{sT3}, 0")
    else:
        A(f"s_add_u32 s{sT2}, s{sT2}, {start}-F_PC_{uid}"); A(f"s_addc_u32 s{sT3}, s{sT3}, 0")
    MIX = os.environ.get("MIX", "0") == "1"
    if uid.startswith("A2"):
        if MIX:
            A(f"s_lshr_b32 s{sT0}, s{sLI}, 2"); nsh = 5
        else:
            A(f"s_lshr_b32 s{sT0}, s{sLI}, 2"); A(f"s_lshl_b32 s{sT0}, s{sT0}, 1"); A(f"s_and_b32 s{sT1}, s{sLI}, 1"); A(f"s_add_u32 s{sT0}, s{sT0}, s{sT1}"); nsh = 6
    elif uid == "A" and MIX:
        A(f"s_lshr_b32 s{sT0}, s{sLI}, 1"); nsh = 6
    else:
        A(f"s_mov_b32 s{sT0}, s{sLI}"); nsh = 7
    A(f"s_lshl_b32 s{sT0}, s{sT0}, 2"); A(f"s_add_u32 s{sT0}, s{sT0}, s{sW}")
    A(f"v_and_b32 v{va}, 7, v0"); A(f"v_lshlrev_b32 v{va}, {nsh}, v{va}")
    A(f"v_add_u32 v{va}, s{sT0}, v{va}"); A(f"v_lshlrev_b32 v{va}, 7, v{va}")
    A(f"v_min_u32 v{va}, {end}-{start}-4, v{va}")
    A("s_mov_b64 exec, 0xff")
    A(f"global_load_dword v{vd}, v{va}, s[{sT2}:{sT3}]")
    A("s_mov_b64 exec, -1")

def release_if_slow(A, uid):
    A(f"s_cmp_lg_u32 s{sFAST}, 0"); A(f"s_cbranch_scc1 F_REL_{uid}")
    A("buffer_wbl2 sc1"); A("s_waitcnt vmcnt(0)")
    A.label(f"F_REL_{uid}")

def flag_store(A, uid, word_sreg_expr, vt):
    A(f"s_cmp_lg_u32 s{sW}, 0"); A(f"s_cbranch_scc1 F_FS_{uid}")
    release_if_slow(A, uid)
    for x in word_sreg_expr: A(x)
    A(f"s_add_u32 s{sT1}, s{sT1}, s{sFL}")
    A(f"v_mov_b32 v{vt}, 1"); A(f"v_mov_b32 v{vt+1}, 0")
    A("s_mov_b64 exec, 1")
    A(f"buffer_store_dword v{vt}, v{vt+1}, {sr(SRD_WS,4)}, s{sT1} offen sc1")
    A("s_mov_b64 exec, -1")
    A.label(f"F_FS_{uid}")
KVWORD = lambda: [f"s_lshr_b32 s{sT1}, s{sLI}, 1", f"s_lshl_b32 s{sT1}, s{sT1}, 2"]
PWORD = lambda: [f"s_lshl_b32 s{sT1}, s{sI}, 2", f"s_add_u32 s{sT1}, s{sT1}, 64"]
QWORD = lambda: [f"s_lshl_b32 s{sT1}, s{sI}, 2", f"s_add_u32 s{sT1}, s{sT1}, 96"]

def reg_load():
    return [f"buffer_load_dword v{vGM}, v{vGM+1}, {sr(SRD_DBG,4)}, 0 offen sc1"]
def reg_check(A, uid, t):
    A.label(f"F_CHK_{uid}")
    A(f"v_subrev_u32 v{t}, 0x01010101, v{vGM}"); A(f"v_not_b32 v{t+1}, v{vGM}")
    A(f"v_and_b32 v{t}, v{t}, v{t+1}"); A(f"v_and_b32 v{t}, 0x80808080, v{t}")
    A(f"v_cmp_ne_u32 vcc, 0, v{t}")
    A(f"s_cbranch_vccz F_CHK_OK_{uid}")
    A("s_sleep 4")
    for x in reg_load(): A(x)
    A("s_waitcnt vmcnt(0)")
    A(f"s_branch F_CHK_{uid}")
    A.label(f"F_CHK_OK_{uid}")
    A(f"s_add_u32 s{sT0}, s{sXCC}, 1"); A(f"s_mul_i32 s{sT0}, s{sT0}, 0x01010101")
    A(f"v_and_b32 v{t}, 0x7f7f7f7f, v{vGM}")
    A(f"v_cmp_eq_u32 s[{sT2}:{sT3}], s{sT0}, v{t}")
    A(f"s_lshl_b32 s{sT1}, s{sHD}, 2")
    A("s_nop 3")
    A(f"s_lshr_b64 s[{sT2}:{sT3}], s[{sT2}:{sT3}], s{sT1}")
    A(f"s_and_b32 s{sT2}, s{sT2}, 15")
    A(f"s_cmp_eq_u32 s{sT2}, 15"); A(f"s_cselect_b32 s{sFAST}, 1, 0")
    if KVST and PST: A(f"s_mov_b32 s{sFAST}, 1")
    if os.environ.get("FORCE_SLOW"): A(f"s_mov_b32 s{sFAST}, 0")

KC = 4160
XR_BYTES = 7680
CH_LDS = 8*KC + XR_BYTES + 4352
CONV_BASE = 65536
assert CONV_BASE + 2*CH_LDS <= LDS
def conv_scalars(A):
    SRD_SSM, SRD_DD = 28, 32
    rank_li(A, sCR, 1, sT0); rank_li(A, sTRK, 0, sT0)
    A(f"s_cmp_lg_u32 s{sCR}, 99"); A(f"s_cselect_b32 s{sT0}, 1835008, 0"); A(f"s_cselect_b32 s{sT1}, 896, 0")
    srd(A, SRD_SSM, "s26", "s27", f"s{sT0}"); srd(A, SRD_DD, "s78", "s79", f"s{sT1}")
    A(f"s_lshl_b32 s44, s{sCR}, 3"); A(f"s_add_u32 s44, s44, s{sX}"); A("s_lshl_b32 s44, s44, 1")
    A(f"s_lshr_b32 s{sT0}, s{sW}, 1"); A(f"s_and_b32 s46, s{sW}, 1")
    A(f"s_add_u32 s48, s44, s{sT0}")
def kern_loads(A, ab):
    SRD_SSM, SRD_DD = 28, 32
    A(f"v_lshlrev_b32 v30, 2, v{vGM+1}")
    A("v_subrev_u32 v31, 16, v30"); A("v_max_i32 v31, 0, v31")
    A(f"s_lshl_b32 s{sT0}, s48, 12")
    for j in range(4):
        e = ab + 8*j
        if j == 0: A(f"buffer_load_dwordx4 {ar(e,4)}, v31, {sr(SRD_SSM,4)}, s{sT0} offen")
        else:      A(f"buffer_load_dwordx4 {ar(e,4)}, v30, {sr(SRD_SSM,4)}, s{sT0} offen offset:{j*1024-16}")
        A(f"buffer_load_dwordx4 {ar(e+4,4)}, v30, {sr(SRD_SSM,4)}, s{sT0} offen offset:{j*1024}")
    A(f"s_lshl_b32 s{sT1}, s48, 1")
    A(f"buffer_load_ushort a{ab+32}, v{vZ}, {sr(SRD_DD,4)}, s{sT1} offen")
def xq_loads(A):
    sD, sKB, sXR, sQR, sD0, sOO, sP = 40, 41, 42, 43, 44, 45, 46
    A(f"s_mov_b32 s{sD}, s48"); A(f"s_lshr_b32 s{sT0}, s{sW}, 1")
    A(f"s_mul_i32 s{sKB}, s{sT0}, {CH_LDS}"); A(f"s_add_u32 s{sKB}, s{sKB}, {CONV_BASE}")
    A(f"s_add_u32 s{sXR}, s{sKB}, {8*KC}"); A(f"s_add_u32 s{sQR}, s{sXR}, {XR_BYTES}")
    A("v_and_b32 v5, 63, v0"); A("v_lshlrev_b32 v1, 4, v5")
    A(f"s_lshl_b32 s{sT0}, s{sD}, 12")
    A(f"s_mul_i32 s{sT1}, s{sP}, {WS_QT - WS_KVT}"); A(f"s_add_u32 s{sT1}, s{sT1}, s{sT0}"); A(f"s_add_u32 s{sT1}, s{sT1}, {WS_KVT}")
    for j in range(4): A(f"buffer_load_dwordx4 {vr(64+4*j,4)}, v1, {sr(SRD_WS,4)}, s{sT1} offen offset:{j*1024} sc1")
def kern_move(A, ab):
    for r in range(32): A(f"v_accvgpr_read_b32 v{128+r}, a{ab+r}")
    A(f"v_accvgpr_read_b32 v12, a{ab+32}")

def conv(A, tag):
    SRD_SSM, SRD_DD, SRD_OUT = 28, 32, 36
    sD, sKB, sXR, sQR, sD0, sOO, sP, sSEL = 40, 41, 42, 43, 44, 45, 46, 47
    vAA, vBA, vAA2, vBA2 = 2, 3, 4, 15
    A("v_and_b32 v6, 31, v5"); A("v_lshrrev_b32 v7, 5, v5")
    for r in range(4): A(f"v_mov_b32 v{80+r}, 0")
    A(f"v_add_u32 v13, s{sXR}, v1")
    A(f"s_cmp_lg_u32 s{sP}, 0"); A(f"s_cbranch_scc1 F_CZ_{tag}")
    A(f"ds_write_b128 v13, v[80:83] offset:5120")
    A(f"ds_write_b128 v13, v[80:83] offset:6144")
    A(f"ds_write_b128 v13, v[80:83] offset:{7680-1024}")
    A.label(f"F_CZ_{tag}")
    A(f"s_xor_b32 s{sT0}, s{sP}, 1"); A(f"s_mul_i32 s{sT0}, s{sT0}, {KC}"); A(f"s_add_u32 s{sT0}, s{sT0}, s{sKB}")
    A("v_and_b32 v8, 3, v5"); A("v_lshrrev_b32 v9, 2, v5"); A("v_and_b32 v9, 3, v9")
    A("v_min_u32 v9, 2, v9")
    A(f"v_mul_u32_u24 v8, {2*KC}, v8"); A("v_lshlrev_b32 v9, 4, v9"); A(f"v_add3_u32 v8, v8, v9, s{sT0}")
    A("ds_write_b128 v8, v[80:83]")
    A(f"v_add_u32 v13, s{sT0}, v1")
    A("v_lshrrev_b32 v14, 2, v5"); A("v_and_b32 v10, 3, v5"); A("v_lshlrev_b32 v10, 4, v10")
    A(f"s_mov_b32 s{sT1}, 68")
    A(f"s_cmp_eq_u32 s{sP}, 0")
    A(f"s_cselect_b32 s{sT1}, 80, s{sT1}"); A(f"s_cselect_b32 s{sT3}, s{sXR}, s{sQR}")
    A(f"s_mov_b32 s{sSEL}, 0x05040302"); A(f"s_cselect_b32 s{sSEL}, 0x07060504, s{sSEL}")
    A(f"v_mul_lo_u32 v14, v14, s{sT1}"); A(f"v_add3_u32 v14, v14, v10, s{sT3}")
    A(f"s_lshl_b32 s{sT1}, s{sT1}, 4")
    A("v_cmp_eq_u32 vcc, 0, v5")
    A("s_nop 1")
    for j in range(4):
        e = 128 + 8*j
        if j == 0:
            for k in range(4): A(f"v_cndmask_b32 v{e+k}, v{e+k}, v80, vcc")
        o = 160 + 16*(j & 1); o2 = o + 8
        for k in range(7): A(f"v_perm_b32 v{o+k}, v{e+k+1}, v{e+k}, s{sSEL}")
        for k in range(1, 7): A(f"v_perm_b32 v{o2+k-1}, v{e+k+1}, v{e+k}, s{sSEL}")
        for a_ in range(4):
            src = (o + a_) if a_ % 2 == 0 else (o2 + a_ - 1)
            A(f"ds_write_b128 v13, {vr(src,4)} offset:{a_*2*KC + 48 + j*1024}")
    if VDEFER: A(f"s_waitcnt vmcnt({NV0})")
    for j in range(4):
        A(f"ds_write2_b32 v14, v{64+4*j}, v{65+4*j} offset0:0 offset1:1")
        A(f"ds_write2_b32 v14, v{66+4*j}, v{67+4*j} offset0:2 offset1:3")
        if j < 3: A(f"v_add_u32 v14, s{sT1}, v14")
    A("v_and_b32 v8, 7, v6"); A(f"v_mul_u32_u24 v8, {KC}, v8"); A("v_lshrrev_b32 v9, 3, v6"); A("v_add_u32 v9, v9, v7"); A("v_lshlrev_b32 v9, 4, v9")
    A(f"v_add3_u32 v8, v8, v9, s{sKB}")
    A("v_sub_u32 v9, 31, v6"); A("v_mul_u32_u24 v9, 80, v9"); A("v_lshlrev_b32 v10, 4, v7"); A(f"v_add3_u32 v9, v9, v10, s{sXR}")
    A(f"s_cmp_eq_u32 s{sP}, 0")
    A(f"s_cselect_b32 s{sT0}, 0, {32*32}"); A(f"v_add_u32 v{vAA}, s{sT0}, v8")
    A(f"s_cselect_b32 s{sT0}, 0, {96*32}"); A(f"v_add_u32 v{vAA2}, s{sT0}, v8")
    A(f"s_mov_b32 s{sT1}, {16*80}"); A(f"s_cselect_b32 s{sT0}, 2560, s{sT1}"); A(f"v_add_u32 v{vBA}, s{sT0}, v9")
    A(f"s_cselect_b32 s{sT0}, 0, {48*80}"); A(f"v_add_u32 v{vBA2}, s{sT0}, v9")
    pst(A, "cset")
    if VDEFER:
        A("s_waitcnt lgkmcnt(0)"); A("s_barrier")
    else:
        A("s_waitcnt vmcnt(0) lgkmcnt(0)"); A("s_barrier")
        A(f"s_cmp_lg_u32 s{sTYPE}, 0"); A("s_cbranch_scc1 F_NOQP")
        flag_store(A, "QP", QWORD(), vTMP)
        A.label("F_NOQP")
    A(flag_load())
    pst(A, "cloop")
    ACC, FRG, NR, LAH = 96, 128, 8, 6
    nvs = [NV0, 0]
    def reads(n):
        b = FRG + 8*(n % NR)
        sg = n if n < 64 else n - 64
        aa, ba = (vAA, vBA) if n < 64 else (vAA2, vBA2)
        return [f"ds_read_b128 {vr(b,4)}, v{aa} offset:{32*sg}",
                f"ds_read_b128 {vr(b+4,4)}, v{ba} offset:{(sg >> 1)*80 + (sg & 1)*32}"]
    A("s_waitcnt lgkmcnt(0)")
    for n in range(LAH):
        for x in reads(n): A(x)
    for n in range(96):
        cnt = 2*(min(n+LAH, 96) - n - 1)
        A(f"s_waitcnt lgkmcnt({cnt})")
        b = FRG + 8*(n % NR)
        acc = vr(ACC if n < 64 else ACC+16, 16)
        c = "0" if n in (0, 64) else acc
        A(f"v_mfma_f32_32x32x16_bf16 {acc}, {vr(b,4)}, {vr(b+4,4)}, {c}")
        if n + LAH < 96:
            for x in reads(n + LAH): A(x)
        if VDEFER and n % 3 == 0 and nvs[0] < 32:
            put(A, vstore(nvs[0])); nvs[0] += 1; nvs[1] += 1
        if n >= 62 and n < 94:
            for r in range(4): A(f"v_accvgpr_write_b32 a{aO + 4*(n-62) + r}, 0")
        if n in (30, 60, 90):
            early_check(A, f"C{n}", n != 90, nvs[1]); nvs[1] = 0
    pst(A, "cend")
    XE, QE = 32, 48
    A("v_sub_u32 v8, 63, v6"); A(f"s_lshl_b32 s{sT0}, s{sP}, 5"); A(f"v_subrev_u32 v8, s{sT0}, v8")
    A("v_mul_u32_u24 v9, 80, v8"); A("v_lshlrev_b32 v10, 3, v7"); A("v_sub_u32 v9, v9, v10"); A(f"v_add_u32 v9, s{sXR}, v9")
    A("v_mul_u32_u24 v13, 68, v8"); A("v_sub_u32 v13, v13, v10"); A(f"v_add_u32 v13, s{sQR}, v13")
    for g in range(4):
        A(f"ds_read_b64 {vr(XE+g*2,2)}, v9 offset:{56 - 16*g}")
        dw = (56 - 16*g)//4
        A(f"ds_read2_b32 {vr(QE+g*2,2)}, v13 offset0:{dw} offset1:{dw+1}")
    A(f"v_add_u32 v14, s{sKB}, v1")
    A("s_nop 7")
    A(f"s_cmp_lg_u32 s{sP}, 0"); A(f"s_cbranch_scc1 F_CX_{tag}")
    for g in range(4): A(f"ds_write_b128 v14, {vr(ACC+16+4*g,4)} offset:{g*KC}")
    A.label(f"F_CX_{tag}")
    A("s_waitcnt lgkmcnt(0)")
    A("v_lshlrev_b32 v12, 16, v12")
    A("s_barrier")
    pst(A, "cbar")
    A(f"s_cmp_eq_u32 s{sP}, 0"); A(f"s_cbranch_scc1 F_CY_{tag}")
    for g in range(4): A(f"ds_read_b128 {vr(64+4*g,4)}, v14 offset:{g*KC}")
    for r in range(16): A(f"v_add_f32 v{ACC+r}, v{ACC+r}, v{ACC+16+r}")
    A("s_waitcnt lgkmcnt(0)")
    for r in range(16): A(f"v_add_f32 v{ACC+r}, v{ACC+r}, v{64+r}")
    A.label(f"F_CY_{tag}")
    A("v_lshlrev_b32 v8, 6, v6"); A("v_lshlrev_b32 v9, 3, v7"); A("v_add_u32 v8, v8, v9")
    A(f"s_lshl_b32 s{sOO}, s{sD}, 12"); A(f"s_lshl_b32 s{sT0}, s{sP}, 11"); A(f"s_add_u32 s{sOO}, s{sOO}, s{sT0}")
    A(f"s_add_u32 s{sOO}, s{sOO}, {WS_OT}")
    T = 16
    for g in range(4):
        y = ACC + 4*g
        xe = XE + g*2; qe = QE + g*2
        xf = [T+3, T+2, T+1, T+0]
        A(f"v_lshlrev_b32 v{T+0}, 16, v{xe}");  A(f"v_and_b32 v{T+1}, 0xffff0000, v{xe}")
        A(f"v_lshlrev_b32 v{T+2}, 16, v{xe+1}"); A(f"v_and_b32 v{T+3}, 0xffff0000, v{xe+1}")
        for r in range(4): A(f"v_mul_f32 v{xf[r]}, v{xf[r]}, v12")
        A(f"v_cvt_pk_bf16_f32 v{T+4}, v{xf[0]}, v{xf[1]}"); A(f"v_cvt_pk_bf16_f32 v{T+5}, v{xf[2]}, v{xf[3]}")
        A(f"v_cvt_pk_bf16_f32 v{T+6}, v{y}, v{y+1}"); A(f"v_cvt_pk_bf16_f32 v{T+7}, v{y+2}, v{y+3}")
        for p in range(2):
            A(f"v_lshlrev_b32 v{T+8+2*p}, 16, v{T+4+p}"); A(f"v_and_b32 v{T+9+2*p}, 0xffff0000, v{T+4+p}")
            A(f"v_lshlrev_b32 v{T+12+2*p}, 16, v{T+6+p}"); A(f"v_and_b32 v{T+13+2*p}, 0xffff0000, v{T+6+p}")
        for r in range(4): A(f"v_add_f32 v{T+8+r}, v{T+12+r}, v{T+8+r}")
        A(f"v_cvt_pk_bf16_f32 v{T+4}, v{T+8}, v{T+9}"); A(f"v_cvt_pk_bf16_f32 v{T+5}, v{T+10}, v{T+11}")
        for p in range(2):
            A(f"v_lshlrev_b32 v{T+8+2*p}, 16, v{T+4+p}"); A(f"v_and_b32 v{T+9+2*p}, 0xffff0000, v{T+4+p}")
        A(f"v_lshlrev_b32 v{T+0}, 16, v{qe}");  A(f"v_and_b32 v{T+1}, 0xffff0000, v{qe}")
        A(f"v_lshlrev_b32 v{T+2}, 16, v{qe+1}"); A(f"v_and_b32 v{T+3}, 0xffff0000, v{qe+1}")
        for r in range(4): A(f"v_mul_f32 v{T+8+r}, v{xf[r]}, v{T+8+r}")
        A(f"v_cvt_pk_bf16_f32 v{64+2*g}, v{T+8}, v{T+9}"); A(f"v_cvt_pk_bf16_f32 v{65+2*g}, v{T+10}, v{T+11}")
        A(f"buffer_store_dwordx2 {vr(64+2*g,2)}, v8, {sr(SRD_WS,4)}, s{sOO} offen offset:{16*g} sc1")


FUSE3 = os.environ.get("FUSE3", "1") == "1"
CTXLD = os.environ.get("CTXLD", " sc1")
WEARLY = os.environ.get("WEARLY", "1") == "1"
MPF = os.environ.get("MPF", "0") == "1"
CPT = os.environ.get("CPT", "0") == "1"
KPT = os.environ.get("KPT", "0") == "1"
PTF = os.environ.get("PTF", " nt")
OPX = os.environ.get('OPX', '')
WQPF = int(os.environ.get('WQPF', '5'))
WLEAD = int(os.environ.get('WLEAD', '0'))
vPFW, vPFD, sPF2 = 18, 31, 96
CPSTEP = int(os.environ.get('CPSTEP', '2'))
WOPF = int(os.environ.get("WOPF", "0"))
WS_FLAG2 = WS_FLAG + 4096
SRD_WO, SRD_OUT = 28, 32
sQB, sMB, sLB, sCX, sWO, sWB, sCB, sWC, sCC, sTRO = 36, 37, 38, 39, 40, 41, 42, 43, 44, 45
DW, DC, WLDS = int(os.environ.get("DW", "10")), int(os.environ.get("DC", "7")), 40960
vOW = [240, 241, 242, 243]
def outproj_setup(A, loads=True):
    if loads: A("s_load_dwordx2 s[46:47], s[0:1], 40"); A("s_load_dwordx2 s[48:49], s[0:1], 96")
    A(f"s_mul_hi_u32 s{sT2}, s{sTRK}, 0x24924925")
    A(f"s_mul_i32 s{sT3}, s{sT2}, 7"); A(f"s_sub_u32 s{sMB}, s{sTRK}, s{sT3}")
    A(f"s_lshl_b32 s{sQB}, s{sX}, 2"); A(f"s_add_u32 s{sQB}, s{sQB}, s{sT2}")
    A("v_and_b32 v244, 63, v0")
    A("v_lshrrev_b32 v245, 2, v244"); A("v_and_b32 v245, 7, v245"); A("v_mul_u32_u24 v245, 896, v245")
    A("v_lshrrev_b32 v246, 5, v244"); A("v_lshlrev_b32 v246, 6, v246")
    A("v_and_b32 v247, 3, v244"); A("v_lshlrev_b32 v247, 4, v247")
    A(f"v_add3_u32 v{vOW[0]}, v245, v246, v247")
    for k in range(1, 4): A(f"v_add_u32 v{vOW[k]}, {k*(7168-1024)}, v{vOW[0]}")
    A(f"s_mul_i32 s{sLB}, s{sW}, {WLDS}")
    A(f"s_lshl_b32 s{sCB}, s{sQB}, 19"); A(f"s_lshl_b32 s{sT0}, s{sW}, 16")
    A(f"s_add_u32 s{sCB}, s{sCB}, s{sT0}"); A(f"s_add_u32 s{sCB}, s{sCB}, {WS_CTX}")
    A(f"s_mul_i32 s{sWB}, s{sW}, {1024*896}"); A(f"s_lshl_b32 s{sT0}, s{sMB}, 7"); A(f"s_add_u32 s{sWB}, s{sWB}, s{sT0}")
    A(f"s_lshl_b32 s{sWC}, s{sX}, 2"); A(f"s_mov_b32 s{sCC}, s{sWC}")
    A(f"s_mul_i32 s{sT0}, s{sWC}, {32*896}"); A(f"s_add_u32 s{sWO}, s{sWB}, s{sT0}")
    A(f"s_lshl_b32 s{sT0}, s{sCC}, 11"); A(f"s_add_u32 s{sCX}, s{sCB}, s{sT0}")
    A("s_waitcnt lgkmcnt(0)")
    A(f"s_cmp_lg_u32 s{sTRK}, 99"); A(f"s_cselect_b32 s{sT0}, 3670016, 0")
    srd(A, SRD_WO, "s46", "s47", f"s{sT0}"); srd(A, SRD_OUT, "s48", "s49", 3670016)
def wload_ops(s_):
    slot = s_ % DW
    g = [[f"s_add_u32 m0, s{sLB}, {slot*4096}", "s_nop 0"]]
    for ko in range(4):
        o = f" offset:{ko*1024}" if ko else ""
        g.append(f"buffer_load_dwordx4 v{vOW[ko]}, {sr(SRD_WO,4)}, s{sWO} offen{o} lds")
    g.append([f"s_add_u32 s{sWO}, s{sWO}, {32*896}", f"s_add_u32 s{sWC}, s{sWC}, 1", f"s_cmp_eq_u32 s{sWC}, 32", f"s_cselect_b32 s{sWO}, s{sWB}, s{sWO}"])
    return g

def outproj(A):
    vL, vRB, vC2 = 1, 4, 11
    vCT = 16; vWF = 16 + 16*(DC+1); vACC = vWF + 32; vTR = 244
    assert vACC + 64 <= 240
    A.label("F_OUTPROJ")
    pst(A, "epi")
    A("s_waitcnt vmcnt(0)")
    A("s_barrier")
    pst(A, "ctxdone")
    A(f"s_cmp_lg_u32 s{sW}, 0"); A("s_cbranch_scc1 F_OP_NOF")
    A(f"v_mov_b32 v16, 1"); A("v_mov_b32 v17, 0")
    A("s_mov_b64 exec, 1")
    A(f"buffer_store_dword v16, v17, {sr(SRD_WS,4)}, s{sFL2} offen sc1")
    A("s_mov_b64 exec, -1")
    A.label("F_OP_NOF")
    A(f"s_cmp_eq_u32 s{sTRK}, 99"); A("s_cbranch_scc1 F_DONE")
    A("v_and_b32 v5, 63, v0")
    A(f"v_lshlrev_b32 v{vL}, 4, v5")
    A("v_lshrrev_b32 v6, 5, v5"); A("v_lshlrev_b32 v6, 8, v6")
    A("v_lshrrev_b32 v7, 2, v5"); A("v_and_b32 v7, 3, v7"); A("v_lshlrev_b32 v7, 6, v7")
    A("v_lshrrev_b32 v8, 4, v5"); A("v_and_b32 v8, 1, v8"); A("v_lshlrev_b32 v8, 5, v8")
    A("v_add3_u32 v6, v6, v7, v8")
    A("v_and_b32 v7, 3, v5"); A("v_lshlrev_b32 v7, 3, v7")
    A(f"v_add3_u32 v{vRB}, v6, v7, s{sLB}")
    A(f"v_add_u32 v{vC2}, 262144, v{vL}")
    vm = []
    NC = DC + 1
    def emit_ops(ops, tag):
        for g in ops:
            put(A, g)
            if isinstance(g, str) and g.startswith("buffer_"): vm.append(tag)
    def wload(s_): emit_ops(wload_ops(s_), ("w", s_))
    def cload_ops(s_):
        slot = s_ % NC
        g = []
        for sl in range(2):
            for qt in range(2):
                va = vL if qt == 0 else vC2
                g.append(f"buffer_load_dwordx4 {vr(vCT+16*slot+8*sl+4*qt,4)}, v{va}, {sr(SRD_WS,4)}, s{sCX} offen offset:{sl*1024}{CTXLD}")
        g.append([f"s_add_u32 s{sCX}, s{sCX}, 2048", f"s_add_u32 s{sCC}, s{sCC}, 1", f"s_cmp_eq_u32 s{sCC}, 32", f"s_cselect_b32 s{sCX}, s{sCB}, s{sCX}"])
        return g
    def cload(s_): emit_ops(cload_ops(s_), ("c", s_))
    def wait_for(tags):
        idx = max([i for i, x in enumerate(vm) if x in tags] + [-1])
        A(f"s_waitcnt vmcnt({min(len(vm) - 1 - idx, 63)})")
    def wread_ops(s_, st):
        slot = s_ % DW
        r = []
        for sl in range(2):
            for mt in range(2):
                for rho in range(2):
                    off = slot*4096 + sl*2048 + rho*1024 + mt*512
                    r.append(f"ds_read_b64_tr_b16 {vr(vWF+16*st+8*sl+4*mt+2*rho,2)}, v{vRB} offset:{off}")
        return r
    def wreads(s_, st): flat(A, wread_ops(s_, st))
    def mfma_ops(s_, st):
        slot = s_ % NC
        m = []
        for sl in range(2):
            for mt in range(2):
                for qt in range(2):
                    acc = vr(vACC + 16*(mt*2+qt), 16)
                    m.append(f"v_mfma_f32_32x32x16_bf16 {acc}, {vr(vWF+16*st+8*sl+4*mt,4)}, {vr(vCT+16*slot+8*sl+4*qt,4)}, {acc}")
        return m
    sFA = 50
    A(f"s_lshr_b32 s{sFA}, s{sQB}, 1"); A(f"s_lshl_b32 s{sFA}, s{sFA}, 7"); A(f"s_lshl_b32 s{sT1}, s{sW}, 4")
    A(f"s_add_u32 s{sFA}, s{sFA}, s{sT1}"); A(f"s_add_u32 s{sFA}, s{sFA}, {WS_FLAG2}")
    A("v_and_b32 v12, 3, v5"); A("v_lshlrev_b32 v12, 2, v12"); A("v_lshlrev_b32 v14, 2, v5")
    A(f"buffer_load_dword v13, v12, {sr(SRD_WS,4)}, s{sFA} offen sc1")
    A(f"buffer_load_dword v15, v14, {sr(SRD_DBG,4)}, 0 offen sc1")
    for s_ in range(DW): wload(s_)
    NTCH = 0
    if os.environ.get("WL2", "0") == "1":
        A(f"s_lshl_b32 s{sT0}, s{sTRK}, 2"); A(f"s_add_u32 s{sT0}, s{sT0}, s{sW}"); A(f"s_lshl_b32 s{sT0}, s{sT0}, 15")
        A(f"v_lshlrev_b32 v238, 3, v{vL}")
        for k in range(4):
            A(f"buffer_load_dword v239, v238, {sr(SRD_WO,4)}, s{sT0} offen"); vm.append("x")
            A(f"s_add_u32 s{sT0}, s{sT0}, 8192")
        NTCH = 4
    for r in range(64): A(f"v_mov_b32 v{vACC+r}, 0")
    A(f"s_lshl_b32 s{sT0}, s{sTRK}, 3"); A(f"s_add_u32 s{sT0}, s{sT0}, s{sX}")
    A(f"s_mul_hi_u32 s{sT2}, s{sT0}, 0x24924925"); A(f"s_mul_i32 s{sT3}, s{sT2}, 7"); A(f"s_sub_u32 s{sT3}, s{sT0}, s{sT3}")
    A("v_and_b32 v6, 31, v0"); A("v_lshrrev_b32 v7, 5, v0")
    A(f"v_lshlrev_b32 v{vTR+8}, 13, v6"); A(f"v_lshl_add_u32 v{vTR+8}, v7, 4, v{vTR+8}")
    sTRI = 51
    A(f"s_lshl_b32 s{sTRI}, s{sT3}, 18"); A(f"s_lshl_b32 s{sT1}, s{sT2}, 7"); A(f"s_add_u32 s{sTRI}, s{sTRI}, s{sT1}"); A(f"s_add_u32 s{sTRI}, s{sTRI}, {WS_OT}")
    A(f"v_mul_u32_u24 v{vTR+9}, {8*1792}, v7"); A(f"v_lshl_add_u32 v{vTR+9}, v6, 2, v{vTR+9}")
    A(f"s_mul_i32 s{sTRO}, s{sT2}, {64*1792}"); A(f"s_lshl_b32 s{sT1}, s{sT3}, 7"); A(f"s_add_u32 s{sTRO}, s{sTRO}, s{sT1}"); A(f"s_add_u32 s{sTRO}, s{sTRO}, 896")
    A(f"s_waitcnt vmcnt({4*DW + NTCH})")
    A(f"s_mov_b32 s{sT0}, 0x80808080")
    A.label("F_OP_CHK")
    A("v_and_b32 v15, 0x80808080, v15")
    A(f"v_cmp_ne_u32 vcc, s{sT0}, v15")
    A("s_cbranch_vccz F_OP_CHK_OK")
    A("s_sleep 4")
    A(f"buffer_load_dword v15, v14, {sr(SRD_DBG,4)}, 0 offen sc1")
    A("s_waitcnt vmcnt(0)")
    A("s_branch F_OP_CHK")
    A.label("F_OP_CHK_OK")
    A.label("F_S2_POLL")
    A("v_cmp_ne_u32 vcc, 1, v13")
    A("s_cbranch_vccz F_S2_OK")
    A("s_sleep 1")
    A(f"buffer_load_dword v13, v12, {sr(SRD_WS,4)}, s{sFA} offen sc1")
    A("s_waitcnt vmcnt(0)")
    A("s_branch F_S2_POLL")
    A.label("F_S2_OK")
    pst(A, "s2")
    for s_ in range(DC): cload(s_)
    A(f"buffer_load_dwordx4 {vr(vTR,4)}, v{vTR+8}, {sr(SRD_WS,4)}, s{sTRI} offen sc1"); vm.append("t")
    A(f"s_add_u32 s{sTRI}, s{sTRI}, 4096")
    A(f"buffer_load_dwordx4 {vr(vTR+4,4)}, v{vTR+8}, {sr(SRD_WS,4)}, s{sTRI} offen sc1"); vm.append("t")
    wait_for([("w", 0)])
    wreads(0, 0)
    NS = 32
    for s_ in range(NS):
        st = s_ & 1
        wait_for([("c", s_), ("w", s_+1)])
        A("s_waitcnt lgkmcnt(0)")
        rd = wread_ops(s_+1, st ^ 1) if s_ + 1 < NS else []
        mem = []
        if s_ + DC < NS: mem += [(g, ("c", s_ + DC)) for g in cload_ops(s_ + DC)]
        if s_ + DW < NS: mem += [(g, ("w", s_ + DW)) for g in wload_ops(s_ + DW)]
        mf = mfma_ops(s_, st)
        mi = 0
        for k in range(8):
            A(mf[k])
            for x in rd[2*k:2*k+2] if k < 4 else []: A(x)
            took = False
            while mi < len(mem) and (not took or not isinstance(mem[mi][0], str)):
                g, tag = mem[mi]; mi += 1
                put(A, g)
                if isinstance(g, str):
                    vm.append(tag); took = True
        while mi < len(mem):
            g, tag = mem[mi]; mi += 1
            put(A, g)
            if isinstance(g, str): vm.append(tag)
    pst(A, "gend")
    A(f"s_mov_b32 s{sT0}, 0x05040100"); A(f"s_mov_b32 s{sT1}, 0x07060302")
    for j in range(8): A(f"v_perm_b32 v{96+j}, v{vTR+4+j//2}, v{vTR+j//2}, s{sT0 + (j & 1)}")
    for j in range(8):
        if j % 2 == 0 and j: A(f"s_add_u32 s{sTRO}, s{sTRO}, {2*1792}")
        A(f"buffer_store_dword v{96+j}, v{vTR+9}, {sr(SRD_OUT,4)}, s{sTRO} offen offset:{(j&1)*1792}")
    A(f"v_add_u32 v6, s{sLB}, v{vL}")
    for t in range(4):
        for g in range(4): A(f"ds_write_b128 v6, {vr(vACC+16*t+4*g,4)} offset:{(t*4+g)*1024}")
    A("s_waitcnt lgkmcnt(0)"); A("s_barrier")
    A(f"s_lshl_b32 s{sT0}, s{sW}, 12")
    A(f"v_add_u32 v6, s{sT0}, v{vL}"); A(f"v_add_u32 v8, {2*WLDS}, v6")
    for src in range(4):
        for g in range(4):
            A(f"ds_read_b128 {vr(16+16*src+4*g,4)}, v{6 if src < 2 else 8} offset:{(src&1)*WLDS+g*1024}")
    A("v_and_b32 v7, 31, v5"); A(f"s_and_b32 s{sT0}, s{sW}, 1"); A(f"s_lshl_b32 s{sT0}, s{sT0}, 5")
    A(f"s_lshl_b32 s{sT1}, s{sQB}, 6"); A(f"s_add_u32 s{sT0}, s{sT0}, s{sT1}")
    A(f"v_add_u32 v7, s{sT0}, v7"); A("v_mul_u32_u24 v7, 1792, v7")
    A("v_lshrrev_b32 v9, 5, v5"); A("v_lshlrev_b32 v9, 3, v9"); A("v_add_u32 v7, v7, v9")
    A(f"s_lshr_b32 s{sT0}, s{sW}, 1"); A(f"s_lshl_b32 s{sT0}, s{sT0}, 6"); A(f"s_lshl_b32 s{sT1}, s{sMB}, 7")
    A(f"s_add_u32 s{sT0}, s{sT0}, s{sT1}")
    A("s_waitcnt lgkmcnt(0)")
    for r in range(16):
        A(f"v_add_f32 v{16+r}, v{16+r}, v{32+r}"); A(f"v_add_f32 v{48+r}, v{48+r}, v{64+r}")
    for r in range(16): A(f"v_add_f32 v{16+r}, v{16+r}, v{48+r}")
    for g in range(4):
        A(f"v_cvt_pk_bf16_f32 v{80+2*g}, v{16+4*g}, v{16+4*g+1}")
        A(f"v_cvt_pk_bf16_f32 v{80+2*g+1}, v{16+4*g+2}, v{16+4*g+3}")
        A(f"buffer_store_dwordx2 {vr(80+2*g,2)}, v7, {sr(SRD_OUT,4)}, s{sT0} offen offset:{16*g}")
    A.label("F_DONE")
    if PROF:
        A("s_waitcnt vmcnt(0)"); pstamp(A, 6); pflush(A, 7, 0, vt=100)
    A("s_endpgm")

def att_setup(A):
    A(f"v_and_b32 v{vFLA}, 63, v0")
    A(f"s_lshl_b32 s{sW8192}, s{sW}, 13")
    A(f"v_lshlrev_b32 v{vDMA0}, 4, v{vFLA}")
    A(f"v_add_u32 v{vDMA0}, s{sW8192}, v{vDMA0}")
    A(f"v_add_u32 v{vDMA1}, 4096, v{vDMA0}")
    if VDEFER:
        A(f"v_and_b32 v{vFLA}, 7, v{vFLA}"); A(f"v_lshlrev_b32 v{vFLA}, 3, v{vFLA}")
    else:
        for x in QWORD(): A(x)
        A(f"s_mul_i32 s{sT1}, s{sT1}, s{sTYPE}")
        A(f"v_cmp_gt_u32 vcc, 16, v{vFLA}")
        A(f"v_lshlrev_b32 v{vFLA}, 2, v{vFLA}"); A(f"v_mov_b32 v{vFLG}, s{sT1}")
        A(f"v_cndmask_b32 v{vFLA}, v{vFLG}, v{vFLA}, vcc")
    A(f"s_lshl_b32 s{sT0}, s{sI}, 1"); A(f"s_sub_u32 s{sT0}, 15, s{sT0}")
    A(f"s_cmp_eq_u32 s{sTYPE}, 0")
    A(f"s_cselect_b32 s{sN1}, 99, s{sT0}")
    A(f"s_cselect_b32 s{sT1}, s{sT0}, 0")
    A(f"s_mov_b32 s{sNT}, {NT}")
    A(f"s_lshl_b32 s{sT2}, s{sHD}, 20")
    A(f"s_add_u32 s{sKBASE}, s{sT2}, {WS_K}"); A(f"s_add_u32 s{sVBASE}, s{sT2}, {WS_V}")
    A(f"s_lshl_b32 s{sT1}, s{sT1}, 15")
    A(f"s_add_u32 s{sKOFF}, s{sKBASE}, s{sT1}"); A(f"s_add_u32 s{sVOFF}, s{sVBASE}, s{sT1}")
    A(f"s_mov_b32 s{sKPOS}, 0"); A(f"s_mov_b32 s{sVPOS}, 0")
    A(f"s_mov_b32 s{sADST}, 0"); A(f"s_mov_b32 s{sRD}, 0"); A(f"s_mov_b32 s{sFLUSH}, 0"); A(f"s_mov_b32 s{sPRE}, 0")
    A(f"s_mov_b32 s{sC}, {f32(CSCALE)}"); A(f"s_mov_b32 s{sTHR}, {f32(THR)}")
    A(f"s_and_b32 s{sREG2}, s{sLI}, 7"); A(f"s_add_u32 s{sREG2}, s{sREG2}, 3")
    A(f"s_lshl_b32 s{sT3}, s{sHD}, 3"); A(f"s_add_u32 s{sT3}, s{sT3}, s{sI}")
    A(f"s_mul_i32 s{sPART}, s{sT3}, {PART_STRIDE}"); A(f"s_add_u32 s{sPART}, s{sPART}, {WS_PART}")
    A(f"s_mov_b32 s{sKEND}, {OOB}"); A(f"s_mov_b32 s{sGOT}, 0")
    for x in PWORD(): A(x)
    A(f"s_add_u32 s{sPF}, s{sT1}, s{sFL}")
    A(f"s_sub_u32 s{sT0}, 15, s{sI}")
    A(f"s_lshl_b32 s{sT1}, s{sT0}, 16"); A(f"s_add_u32 s{sQL}, s{sT1}, s{sT2}"); A(f"s_add_u32 s{sQL}, s{sQL}, s{sW8192}")
    if WS_Q: A(f"s_add_u32 s{sQL}, s{sQL}, {WS_Q}")
    A(f"s_cmp_eq_u32 s{sTYPE}, 0"); A(f"s_cselect_b32 s{sT0}, s{sT0}, s{sI}")
    A(f"s_lshl_b32 s{sT0}, s{sT0}, 2"); A(f"s_add_u32 s{sT0}, s{sT0}, s{sW}")
    A(f"s_lshl_b32 s{sCTX}, s{sT0}, 18"); A(f"s_lshl_b32 s{sT0}, s{sHD}, 14")
    A(f"s_add_u32 s{sCTX}, s{sCTX}, s{sT0}"); A(f"s_add_u32 s{sCTX}, s{sCTX}, {WS_CTX}")

    A(f"s_add_u32 s{sT0}, s{sLI}, s{sW}"); A(f"s_and_b32 s{sT0}, s{sT0}, {CPSTEP-1}"); A(f"s_add_u32 s{sCPT}, s{sT0}, {17 - 4*CPSTEP}")
    A(f"s_lshl_b32 s{sCPO}, s{sTRK}, 2"); A(f"s_add_u32 s{sCPO}, s{sCPO}, s{sW}"); A(f"s_lshl_b32 s{sCPO}, s{sCPO}, 15")

def flag_load(v=0):
    return f"buffer_load_dword v{vFLG}, v{vFLA}, {sr(SRD_WS,4)}, s{sFL} offen offset:{4*v} sc1"

def first_tiles(A, uid):
    flat(A, dK())
    A(f"s_cmp_eq_u32 s{sTYPE}, 0"); A(f"s_cbranch_scc1 F_NOQL_{uid}")
    A(f"s_cmp_eq_u32 s{sQL}, -1"); A(f"s_cbranch_scc1 F_NOQL_{uid}")
    for sl in range(16):
        if sl % 4 == 0 and sl: A(f"s_add_u32 s{sQL}, s{sQL}, 4096")
        A(f"buffer_load_dwordx4 {ar(aQ+4*sl,4)}, v{vDMA0}, {sr(SRD_WS,4)}, s{sQL} offen offset:{(sl%4)*1024}")
    A.label(f"F_NOQL_{uid}")
    flat(A, dK())
    A(f"s_mov_b32 s{sPRE}, 1")

def early_check(A, uid, reload, younger=0):
    A(f"s_cmp_lg_u32 s{sPRE}, 0"); A(f"s_cbranch_scc1 F_EC_{uid}")
    A(f"s_cmp_eq_u32 s{sFAST}, 0"); A(f"s_cbranch_scc1 F_EC_{uid}")
    A(f"s_waitcnt vmcnt({younger})")
    A(f"v_cmp_ne_u32 vcc, 1, v{vFLG}")
    A(f"s_cbranch_vccz F_ECGO_{uid}")
    if reload: A(flag_load())
    A.label(f"F_EC_{uid}")
def early_go(A, uid):
    A.label(f"F_ECGO_{uid}")
    first_tiles(A, uid)
    A(f"s_branch F_EC_{uid}")

def attention(A):
    pst(A, "att")
    A(f"s_cmp_lg_u32 s{sPRE}, 0"); A("s_cbranch_scc1 F_S1_DONE")
    A.label("F_S1_POLL")
    A(flag_load())
    A("s_waitcnt vmcnt(0)")
    A(f"v_cmp_ne_u32 vcc, 1, v{vFLG}")
    A("s_cbranch_vccz F_S1_OK")
    A("s_sleep 2"); A("s_branch F_S1_POLL")
    A.label("F_S1_OK")
    A(f"s_cmp_lg_u32 s{sFAST}, 0"); A("s_cbranch_scc1 F_S1_F")
    A("buffer_inv sc1"); A("s_waitcnt vmcnt(0)")
    A.label("F_S1_F")
    first_tiles(A, "BLK")
    A.label("F_S1_DONE")
    pstamp(A, 3)
    A("v_and_b32 v14, 63, v0")
    A(f"v_lshlrev_b32 v{vL16}, 4, v14")
    A("v_and_b32 v13, 31, v14"); A("v_lshrrev_b32 v15, 5, v14"); A("v_lshlrev_b32 v15, 2, v15")
    A("v_sub_u32 v13, v13, v15"); A(f"s_lshl_b32 s{sT0}, s{sW}, 5"); A(f"v_add_u32 v13, s{sT0}, v13")
    A("v_cvt_f32_i32 v13, v13"); A("v_add_f32 v13, 0.5, v13"); A(f"v_mul_f32 v{vTHRB}, {f32(BIG)}, v13")
    A(f"v_mov_b32 v{vRD}, v{vL16}")
    A(f"v_mov_b32 v{vL}, 0")
    if VDEFER:
        if FUSE3: outproj_setup(A)
        code_prefetch(A, "B", "F_LOOP", "F_END", 236, 237)
    if not VDEFER:
        A("s_waitcnt vmcnt(4) lgkmcnt(0)"); A("s_barrier")
        pst(A, "p0")
        for k in range(LA): A(f"ds_read_b128 {fr(k)}, v{vRD} offset:{QK_OFF[k]}")
        phase(A, qk_mfmas(0), [], dV() + dK(), "P0", prior=0)
        A("s_nop 15")
        rowmax(A, 0, vU0)
        A(f"v_mul_f32 v{vMC}, s{sC}, v{vU0}")
        if FUSE3: A("s_load_dwordx2 s[46:47], s[0:1], 40"); A("s_load_dwordx2 s[48:49], s[0:1], 96")
        code_prefetch(A, "B", "F_LOOP", "F_END", 236, 237)
        flat(A, softmax_half(0, 0))
        if FUSE3: outproj_setup(A, loads=False)
    else:
        flat(A, [wrap_add(sADST, SLOT, sT0)])
        A("s_waitcnt vmcnt(0) lgkmcnt(0)"); A("s_barrier")
        A(f"s_cmp_eq_u32 s{sTYPE}, 0"); A("s_cbranch_scc1 F_NOVP")
        flag_store(A, "VP", KVWORD(), vU0)
        A.label("F_NOVP")
        pst(A, "p0")
        for k in range(LA): A(f"ds_read_b128 {fr(k)}, v{vRD} offset:{QK_OFF[k]}")
        phase(A, qk_mfmas(0), [], dK(), "P0", extra={26: [flag_load(1)]}, prior=0)
        A("s_nop 15")
        rowmax(A, 0, vU0)
        A(f"v_mul_f32 v{vMC}, s{sC}, v{vU0}")
        flat(A, softmax_half(0, 0))
        A.label("F_V_POLL")
        A("s_waitcnt vmcnt(0)")
        A(f"v_cmp_ne_u32 vcc, 1, v{vFLG}")
        A("s_cbranch_vccz F_V_OK")
        A("s_sleep 1"); A(flag_load(1)); A("s_branch F_V_POLL")
        A.label("F_V_OK")
        A(f"s_cmp_lg_u32 s{sFAST}, 0"); A("s_cbranch_scc1 F_V_F")
        A("buffer_inv sc1"); A("s_waitcnt vmcnt(0)")
        A.label("F_V_F")
        A(f"s_mov_b32 s{sT3}, s{sADST}"); A(f"s_mov_b32 s{sADST}, {2*SLOT}")
        flat(A, dV())
        A(f"s_mov_b32 s{sADST}, s{sT3}")
        A(f"s_mov_b32 s{sFLUSH}, 1")
    A(f"s_mov_b32 s{sJ1}, 1")
    pst(A, "loop")
    A.label("F_LOOP")
    for b in (0, 1):
        nb = b ^ 1
        A(f"s_cmp_eq_u32 s{sJ1}, s{sN1}"); A(f"s_cbranch_scc1 F_QSW_{b}"); A.label(f"F_QSW_RET_{b}")
        phase(A, qk_mfmas(nb), softmax_half(b, 1), dV(), f"A{b}")
        A(f"v_add_f32 v{vTS0}, v{vTS0}, v{vTS1}")
        A(f"v_cmp_nge_f32 vcc, s{sTHR}, v{vTS0}")
        A(f"s_cbranch_vccnz F_RARE_{b}"); A.label(f"F_RARE_RET_{b}")
        A(f"v_add_f32 v{vL}, v{vL}, v{vTS0}")
        if b == 0:
            A(f"s_sub_u32 s{sT2}, s{sJ1}, 2"); A(f"s_cmp_eq_u32 s{sT2}, s{sN1}"); A(f"s_cbranch_scc1 F_PUB_0"); A.label(f"F_PUB_RET_0")
        A(f"s_cmp_ge_u32 s{sJ1}, {NT-2}"); A(f"s_cbranch_scc1 F_MASK_{nb}"); A.label(f"F_MASK_RET_{nb}")
        A(f"s_cmp_eq_u32 s{sJ1}, s{sN1}"); A(f"s_cbranch_scc1 F_INIT_{nb}"); A.label(f"F_INIT_RET_{nb}")
        phase(A, pv_mfmas(b), softmax_half(nb, 0), dK(), f"B{b}")
        A.label(f"F_HALF_END_{b}")
        A(f"s_cmp_eq_u32 s{sJ1}, s{sREG2}"); A(f"s_cbranch_scc1 F_REG2_{b}"); A.label(f"F_REG2_RET_{b}")
        if b == 1:
            A(f"s_cmp_eq_u32 s{sJ1}, 12"); A("s_cbranch_scc1 F_PFL"); A.label("F_PFL_RET")
        if b == 0:
            A(f"s_cmp_eq_u32 s{sJ1}, 13"); A("s_cbranch_scc1 F_PCK"); A.label("F_PCK_RET")
            A(f"s_cmp_eq_u32 s{sJ1}, 15"); A("s_cbranch_scc1 F_PFL2"); A.label("F_PFL2_RET")
        if CPT:
            A(f"s_cmp_eq_u32 s{sJ1}, s{sCPT}"); A(f"s_cbranch_scc1 F_CPT_{b}"); A.label(f"F_CPT_RET_{b}")
        if WOPF and b == 0:
            A(f"s_cmp_eq_u32 s{sJ1}, {WOPF}"); A("s_cbranch_scc1 F_WOPF"); A.label("F_WOPF_RET")
        if b == 0:
            A(f"s_cmp_eq_u32 s{sJ1}, s{sN1}"); A("s_cbranch_scc1 F_SPECIAL")
        A(f"s_add_u32 s{sJ1}, s{sJ1}, 1")
    A(f"s_cmp_lt_u32 s{sJ1}, {NT}"); A("s_cbranch_scc1 F_LOOP")
    A.label("F_TAILC")
    pstamp(A, 4)
    A("s_waitcnt vmcnt(0) lgkmcnt(0)"); A("s_barrier")
    A(f"s_cmp_eq_u32 s{sN1}, 15"); A("s_cbranch_scc1 F_PUB_2"); A.label("F_PUB_RET_2")
    flat(A, [wrap_add(sRD, SLOT, sT1)])
    A(f"v_add_u32 v{vRD}, s{sRD}, v{vL16}")
    for k in range(LA): A(f"ds_read_b128 {fr(k)}, v{vRD} offset:{PV_OFF[k]}")
    PSLOT = [3, 0, 1, 2]
    def part_chunk(c):
        g = [[f"s_add_u32 m0, s{sW8192}, {PSLOT[c]*SLOT}", f"s_add_u32 s{sT0}, s{sPART}, {c*SLOT}"]]
        for j in range(4):
            o = f" offset:{j*1024}" if j else ""
            g.append(f"buffer_load_dwordx4 v{vDMA0}, {sr(SRD_WS,4)}, s{sT0} offen{o} lds")
        g.append(["s_add_u32 m0, m0, 4096", "s_nop 0"])
        for j in range(4):
            o = f" offset:{j*1024}" if j else ""
            g.append(f"buffer_load_dwordx4 v{vDMA1}, {sr(SRD_WS,4)}, s{sT0} offen{o} lds")
        return g
    def part_stats():
        A(f"s_lshl_b32 s{sT1}, s{sW}, 10"); A(f"s_add_u32 s{sT1}, s{sT1}, s{sPART}"); A(f"s_add_u32 s{sT1}, s{sT1}, {4*SLOT}")
        A(f"buffer_load_dwordx4 {vr(48,4)}, v{vL16}, {sr(SRD_WS,4)}, s{sT1} offen")
    A(f"s_cmp_lg_u32 s{sTYPE}, 0"); A("s_cbranch_scc1 F_NOPRE")
    A(f"s_cmp_eq_u32 s{sFAST}, 0"); A("s_cbranch_scc1 F_NOPRE")
    A(f"s_cmp_lg_u32 s{sGOT}, 0"); A("s_cbranch_scc1 F_PRE2")
    A("v_cmp_ne_u32 vcc, 1, v248")
    A("s_cbranch_vccnz F_NOPRE")
    flat(A, part_chunk(0)); flat(A, part_chunk(1))
    A.label("F_PRE2")
    part_stats()
    flat(A, part_chunk(2)); flat(A, part_chunk(3))
    A(f"s_mov_b32 s{sGOT}, 2")
    A.label("F_NOPRE")
    pst(A, "pre")
    flat(A, softmax_half(0, 1))
    A(f"v_add_f32 v{vTS0}, v{vTS0}, v{vTS1}")
    A(f"v_cmp_nge_f32 vcc, s{sTHR}, v{vTS0}")
    A(f"s_cbranch_vccnz F_RARE_2"); A.label(f"F_RARE_RET_2")
    A(f"v_add_f32 v{vL}, v{vL}, v{vTS0}")
    mf = pv_mfmas(0)
    for k in range(32):
        if k % 4 == 0:
            issued = min(k - 1 + LA, 31)
            A(f"s_waitcnt lgkmcnt({max(issued - (k+3), 0)})")
        A(mf[k])
        if k + LA < 32: A(f"ds_read_b128 {fr(k+LA)}, v{vRD} offset:{PV_OFF[k+LA]}")
    pstamp(A, 5)
    A(f"s_cmp_lg_u32 s{sTYPE}, 0"); A("s_cbranch_scc1 F_EPI_B")
    A(f"s_cmp_eq_u32 s{sGOT}, 2"); A("s_cbranch_scc1 F_GOT")
    A.label("F_POLL")
    A(f"buffer_load_dword v248, v249, {sr(SRD_WS,4)}, s{sPF} offen sc1")
    A("s_waitcnt vmcnt(0)")
    A(f"v_cmp_ne_u32 vcc, 1, v248")
    A("s_cbranch_vccz F_POLL_DONE")
    A("s_sleep 2"); A("s_branch F_POLL")
    A.label("F_POLL_DONE")
    A(f"s_cmp_lg_u32 s{sFAST}, 0"); A("s_cbranch_scc1 F_POLL_F")
    A("buffer_inv sc1"); A("s_waitcnt vmcnt(0)")
    A.label("F_POLL_F")
    flat(A, part_chunk(0)); flat(A, part_chunk(1))
    part_stats()
    flat(A, part_chunk(2)); flat(A, part_chunk(3))
    A.label("F_GOT")
    A("s_waitcnt vmcnt(16)")
    pst(A, "got")
    A(f"v_add_u32 v25, {65536}, v{vDMA0}")
    def pread(n):
        c = n >> 2
        base, off = (vDMA0, PSLOT[c]*SLOT) if PSLOT[c] < 2 else (25, (PSLOT[c]-2)*SLOT)
        for h_ in range(2):
            A(f"ds_read_b128 {vr(128+8*(n&3)+4*h_,4)}, v{base} offset:{off + ((2*n+h_) & 7)*1024}")
    for n in range(3): pread(n)
    A(f"v_max_f32 v20, v{vMC}, v48")
    A(f"v_sub_f32 v21, v{vMC}, v20"); A("v_sub_f32 v22, v48, v20")
    A("v_exp_f32 v21, v21"); A("v_exp_f32 v22, v22")
    A("s_nop 0")
    A(f"v_mul_f32 v23, v21, v{vL}"); A("v_fmac_f32 v23, v22, v49")
    A("v_mov_b32 v24, v23"); A("s_nop 1"); A("v_permlane32_swap_b32 v24, v23"); A("s_nop 1")
    A("v_add_f32 v23, v23, v24")
    A("v_rcp_f32 v23, v23"); A("s_nop 0")
    A("v_mul_f32 v21, v21, v23"); A("v_mul_f32 v22, v22, v23")
    n = 0
    for dt in range(8):
        for t in range(2):
            tb = 32 + (n & 1)*8; tc = 128 + 8*(n & 3); ob = 80 + (n & 3)*4
            if n + 3 < 16:
                if n + 3 == 8: A(f"s_waitcnt vmcnt({8 + n})")
                if n + 3 == 12: A(f"s_waitcnt vmcnt({n})")
                pread(n + 3)
            for r in range(8): A(f"v_accvgpr_read_b32 v{tb+r}, a{aO+16*dt+8*t+r}")
            for r in range(8): A(f"v_mul_f32 v{tb+r}, v21, v{tb+r}")
            A(f"s_waitcnt lgkmcnt({2*min(3, 15-n)})")
            for r in range(8): A(f"v_fmac_f32 v{tb+r}, v22, v{tc+r}")
            for r in range(4): A(f"v_cvt_pk_bf16_f32 v{ob+r}, v{tb+2*r}, v{tb+2*r+1}")
            tot = (2*dt+t)*1024
            A(f"s_add_u32 s{sT0}, s{sCTX}, {tot & ~0xfff}")
            A(f"buffer_store_dwordx4 {vr(ob,4)}, v{vL16}, {sr(SRD_WS,4)}, s{sT0} offen offset:{tot & 0xfff}" + (" sc1" if FUSE3 else ""))
            n += 1
    if FUSE3: A("s_branch F_OUTPROJ")
    else:
        if PROF:
            A("s_waitcnt vmcnt(0)"); pstamp(A, 6); pflush(A, 7, 0)
        A("s_endpgm")
    A.label("F_EPI_B")
    pst(A, "got")
    A(f"v_mov_b32 v23, v{vL}"); A(f"v_mov_b32 v24, v{vL}"); A("s_nop 1"); A("v_permlane32_swap_b32 v24, v23"); A("s_nop 1")
    A("v_add_f32 v23, v23, v24")
    A("v_rcp_f32 v21, v23"); A("s_nop 7")
    n = 0
    for dt in range(8):
        for t in range(2):
            tb = 32 + (n & 1)*8; ob = 48 + (n & 3)*4
            for r in range(8): A(f"v_accvgpr_read_b32 v{tb+r}, a{aO+16*dt+8*t+r}")
            for r in range(8): A(f"v_mul_f32 v{tb+r}, v21, v{tb+r}")
            for r in range(4): A(f"v_cvt_pk_bf16_f32 v{ob+r}, v{tb+2*r}, v{tb+2*r+1}")
            tot = (2*dt+t)*1024
            A(f"s_add_u32 s{sT0}, s{sCTX}, {tot & ~0xfff}")
            A(f"buffer_store_dwordx4 {vr(ob,4)}, v{vL16}, {sr(SRD_WS,4)}, s{sT0} offen offset:{tot & 0xfff}" + (" sc1" if FUSE3 else ""))
            n += 1
    if FUSE3: outproj(A)
    else:
        if PROF:
            A("s_waitcnt vmcnt(0)"); pstamp(A, 6); pflush(A, 7, 0)
        A("s_endpgm")
    if CPT:
        for b in (0, 1):
            A.label(f"F_CPT_{b}")
            A(f"v_lshlrev_b32 v239, 3, v{vL16}")
            A(f"buffer_load_dword v238, v239, {sr(SRD_WO,4)}, s{sCPO} offen")
            A(f"s_add_u32 s{sCPO}, s{sCPO}, 8192")
            A(f"s_add_u32 s{sCPT}, s{sCPT}, {CPSTEP}")
            A(f"s_branch F_CPT_RET_{b}")
    for nm in ("F_PFL", "F_PFL2"):
        A.label(nm)
        if nm == "F_PFL" and os.environ.get("CPF2", "1") == "1": code_prefetch(A, "B2", "F_TAILC", "F_END", 238, 239, neg=True)
        A("v_mov_b32 v249, 0")
        A(f"buffer_load_dword v248, v249, {sr(SRD_WS,4)}, s{sPF} offen sc1")
        A(f"s_branch {nm}_RET")
    A.label("F_PCK")
    A(f"s_cmp_lg_u32 s{sTYPE}, 0"); A("s_cbranch_scc1 F_PCK_RET")
    A(f"s_cmp_eq_u32 s{sFAST}, 0"); A("s_cbranch_scc1 F_PCK_RET")
    A("s_waitcnt vmcnt(16)")
    A("v_cmp_ne_u32 vcc, 1, v248")
    A("s_cbranch_vccnz F_PCK_RET")
    A(f"s_mov_b32 s{sKEND}, s{sPART}"); A(f"s_mov_b32 s{sGOT}, 1")
    A("s_branch F_PCK_RET")
    A.label("F_SPECIAL")
    A(f"s_add_u32 s{sJ1}, s{sJ1}, 1")
    A("v_mov_b32 v244, v%d" % vSMC); A("v_mov_b32 v245, v%d" % vSL); A("v_mov_b32 v246, 0"); A("v_mov_b32 v247, 0")
    exA, exB = {}, {}
    for q in range(32):
        g = 2 + ((q * 3) // 2 if ALT else (q * 7) // 4)
        va = vDMA0 if (q & 7) < 4 else vDMA1
        op = [f"s_add_u32 s{sT2}, s{sPART}, {(q >> 3)*SLOT}",
              f"buffer_store_dwordx4 {ar(aO+4*q,4)}, v{va}, {sr(SRD_WS,4)}, s{sT2} offen offset:{(q&3)*1024}{PST}"]
        assert g < 32 + (8*(q >> 3) if ALT else 4*(q >> 2)) - 1
        (exA if g < 32 else exB).setdefault(g % 32 if g >= 32 else g, []).append(op)
    exA.setdefault(1, []).append([f"s_lshl_b32 s{sT2}, s{sW}, 10", f"s_add_u32 s{sT2}, s{sT2}, s{sPART}", f"s_add_u32 s{sT2}, s{sT2}, {4*SLOT}",
                                  f"buffer_store_dwordx4 v[244:247], v{vL16}, {sr(SRD_WS,4)}, s{sT2} offen{PST}"])
    nA = phase(A, qk_mfmas(0), softmax_half(1, 1), dV(), "SA", extra=exA, prior=8)
    A(f"v_add_f32 v{vTS0}, v{vTS0}, v{vTS1}")
    A(f"v_cmp_nge_f32 vcc, s{sTHR}, v{vTS0}")
    A(f"s_cbranch_vccnz F_RARE_3"); A.label(f"F_RARE_RET_3")
    A(f"v_add_f32 v{vL}, v{vL}, v{vTS0}")
    A(f"s_cmp_ge_u32 s{sJ1}, {NT-2}"); A("s_cbranch_scc1 F_MASK_2"); A.label("F_MASK_RET_2")
    phase(A, pv_mfmas(1, fresh=True), softmax_half(0, 0), dK(), "SB", extra=exB, prior=nA)
    A(f"s_mov_b32 s{sFLUSH}, 1")
    A("s_branch F_HALF_END_1")
    if WOPF:
        A.label("F_WOPF")
        A("s_load_dwordx2 s[46:47], s[0:1], 40")
        A(f"s_lshl_b32 s{sT0}, s{sLI}, 2"); A(f"s_add_u32 s{sT0}, s{sT0}, s{sW}"); A(f"s_mul_i32 s{sT0}, s{sT0}, {224*128}")
        A(f"v_lshlrev_b32 v{vU0}, 3, v{vL16}")
        A("s_waitcnt lgkmcnt(0)")
        srd(A, 28, "s46", "s47", 3670016)
        for k in range(4):
            if k == 3: A("s_mov_b64 exec, 0xffffffff")
            A(f"buffer_load_dword v249, v{vU0}, s[28:31], s{sT0} offen")
            A(f"s_add_u32 s{sT0}, s{sT0}, 8192")
        A("s_mov_b64 exec, -1")
        A("s_branch F_WOPF_RET")
    for b in (0, 1):
        A.label(f"F_REG2_{b}")
        A(f"s_cmp_lg_u32 s{sW}, 0"); A(f"s_cbranch_scc1 F_REG2_RET_{b}")
        A(f"s_add_u32 s{sT1}, s{sXCC}, 0x81"); A(f"v_mov_b32 v{vU0}, s{sT1}"); A(f"v_mov_b32 v{vU1}, 0")
        A("s_mov_b64 exec, 1")
        A(f"buffer_store_byte v{vU0}, v{vU1}, {sr(SRD_DBG,4)}, s{sPOS} offen sc1")
        A("s_mov_b64 exec, -1")
        A(f"s_branch F_REG2_RET_{b}")
    for uid in ("A0", "A1", "B0", "B1"):
        A.label(f"F_W49_{uid}")
        A(f"s_sub_u32 s{sFLUSH}, s{sFLUSH}, 1")
        A("s_waitcnt vmcnt(8)")
        A(f"s_branch F_WD_{uid}")
    for b in (0, 1):
        A.label(f"F_QSW_{b}")
        A("s_nop 7")
        for r in range(64): A(f"v_accvgpr_mov_b32 a{aQ+r}, a{aQ2+r}")
        A("s_nop 1")
        A(f"s_branch F_QSW_RET_{b}")
    for b in (0, 1, 2, 3):
        buf = b & 1
        A.label(f"F_RARE_{b}")
        A("s_nop 15")
        rowmax(A, buf, vU0)
        A(f"v_mul_f32 v{vU0}, s{sC}, v{vU0}")
        A(f"v_max_f32 v{vU0}, v{vU0}, v{vMC}")
        A(f"v_sub_f32 v{vU1}, v{vMC}, v{vU0}")
        A(f"v_exp_f32 v{vU1}, v{vU1}")
        A(f"v_mov_b32 v{vMC}, v{vU0}")
        A(f"v_mul_f32 v{vL}, v{vL}, v{vU1}")
        for r in (range(0, 128, 4) if b != 3 else []):
            for q in range(4): A(f"v_accvgpr_read_b32 v{vT+q}, a{aO+r+q}")
            for q in range(4): A(f"v_mul_f32 v{vT+q}, v{vU1}, v{vT+q}")
            for q in range(4): A(f"v_accvgpr_write_b32 a{aO+r+q}, v{vT+q}")
        flat(A, softmax_half(buf, 0)); flat(A, softmax_half(buf, 1))
        A(f"v_add_f32 v{vTS0}, v{vTS0}, v{vTS1}")
        A("s_nop 1")
        A(f"s_branch F_RARE_RET_{b}")
    for nb in (0, 1):
        A.label(f"F_MASK_{nb}")
        A("s_nop 15")
        add = 0 if nb == 1 else 64
        for st in range(2):
            for r in range(16):
                c = add + 32*st + 8*(r >> 2) + (r & 3)
                t = vT + (r & 3)
                A(f"v_add_f32 v{t}, {f32(-c*BIG)}, v{vTHRB}" if c else f"v_mov_b32 v{t}, v{vTHRB}")
                A(f"v_min_f32 v{S[nb]+16*st+r}, v{S[nb]+16*st+r}, v{t}")
        A(f"s_branch F_MASK_RET_{nb}")
        if nb == 0:
            A.label("F_MASK_2")
            A("s_nop 15")
            for st in range(2):
                for r in range(16):
                    c = add + 32*st + 8*(r >> 2) + (r & 3)
                    t = vT + (r & 3)
                    A(f"v_add_f32 v{t}, {f32(-c*BIG)}, v{vTHRB}" if c else f"v_mov_b32 v{t}, v{vTHRB}")
                    A(f"v_min_f32 v{S[nb]+16*st+r}, v{S[nb]+16*st+r}, v{t}")
            A("s_branch F_MASK_RET_2")
        A.label(f"F_INIT_{nb}")
        A("s_nop 15")
        A(f"v_mov_b32 v{vSMC}, v{vMC}"); A(f"v_mov_b32 v{vSL}, v{vL}")
        rowmax(A, nb, vU0)
        A(f"v_mul_f32 v{vMC}, s{sC}, v{vU0}")
        A(f"v_mov_b32 v{vL}, 0")
        A(f"s_branch F_INIT_RET_{nb}")
    for b in (0, 2):
        A.label(f"F_PUB_{b}")
        flag_store(A, f"PUB{b}", PWORD(), vU0)
        A(f"s_branch F_PUB_RET_{b}")

def gen():
    A = Asm()
    A(kernel_header(NAME))
    A("s_cmp_ge_u32 s2, 256"); A("s_cbranch_scc1 F_END")
    pstamp(A, 0)
    A("s_load_dwordx4 s[64:67], s[0:1], 0")
    A("s_load_dwordx4 s[68:71], s[0:1], 16")
    A("s_load_dwordx2 s[72:73], s[0:1], 32")
    A("s_load_dwordx4 s[76:79], s[0:1], 104")
    A("s_load_dwordx4 s[44:47], s[0:1], 48")
    A("s_load_dwordx4 s[80:83], s[0:1], 64")
    A("s_load_dwordx4 s[96:99], s[0:1], 80")
    A("v_lshrrev_b32 v26, 6, v0")
    A("v_and_b32 v27, 63, v0")
    A(f"v_readfirstlane_b32 s{sW}, v26")
    A(f"s_getreg_b32 s{sXCC}, hwreg(HW_REG_XCC_ID, 0, 4)")
    A(f"s_and_b32 s{sX}, s2, 7"); A(f"s_lshr_b32 s{sLI}, s2, 3")
    A(f"s_and_b32 s{sT0}, s{sLI}, 1"); A(f"s_lshl_b32 s{sHD}, s{sX}, 1"); A(f"s_add_u32 s{sHD}, s{sHD}, s{sT0}")
    A(f"s_lshr_b32 s{sMT}, s{sLI}, 2")
    A(f"s_bfe_u32 s{sISV}, s{sLI}, 0x10001")
    sWM, sWN = sT4, sT5
    A(f"s_lshr_b32 s{sWM}, s{sW}, 1"); A(f"s_and_b32 s{sWN}, s{sW}, 1")
    A("v_lshrrev_b32 v28, 3, v27"); A("v_and_b32 v29, 7, v27"); A("v_lshrrev_b32 v30, 4, v27")
    A(f"s_lshl_b32 s{sT0}, s{sW}, 5")
    A(f"v_add_u32 v28, s{sT0}, v28")
    for j in range(4):
        A(f"v_add_u32 v31, {4*j}, v30"); A("v_and_b32 v31, 7, v31"); A("v_xor_b32 v31, v29, v31"); A("v_lshlrev_b32 v31, 4, v31")
        A(f"v_add_u32 v32, {8*j}, v28")
        A(f"v_add_u32 v34, {16*(j&1) + 8*(j>>1)}, v28")
        A(f"v_lshlrev_b32 v33, 11, v34"); A(f"v_add_u32 v33, v33, v31")
        A(f"v_subrev_u32 v{vOFFC+j}, {j*1024}, v33")
        A(f"v_mul_u32_u24 v33, 896, v32"); A(f"v_add_u32 v33, v33, v31")
        A(f"v_subrev_u32 v{vOFFX+j}, {j*1024}, v33")
    A("v_lshrrev_b32 v31, 2, v27"); A("v_and_b32 v31, 7, v31"); A("v_lshlrev_b32 v31, 13, v31")
    A("v_lshrrev_b32 v32, 5, v27"); A("v_lshlrev_b32 v32, 6, v32")
    A("v_and_b32 v33, 3, v27"); A("v_lshlrev_b32 v33, 4, v33")
    A("v_add3_u32 v31, v31, v32, v33")
    A(f"s_lshl_b32 s{sT0}, s{sW}, 7")
    A(f"v_add_u32 v31, s{sT0}, v31")
    for j in range(4): A(f"v_add_u32 v{vOFFW+j}, {j*65536 - j*1024}, v31")
    A("v_and_b32 v31, 31, v27"); A("v_lshlrev_b32 v31, 7, v31")
    A("v_lshrrev_b32 v32, 5, v27")
    A("v_lshrrev_b32 v33, 1, v27"); A("v_and_b32 v33, 7, v33")
    for s in range(4):
        A(f"v_add_u32 v34, {2*s}, v32"); A("v_xor_b32 v34, v34, v33"); A("v_lshlrev_b32 v34, 4, v34")
        A(f"v_add_u32 v{vBC+s}, v31, v34")
    A("v_lshlrev_b32 v31, 10, v32")
    A("v_lshrrev_b32 v33, 2, v27"); A("v_and_b32 v33, 3, v33"); A("v_lshlrev_b32 v33, 6, v33"); A("v_add_u32 v31, v31, v33")
    A("v_lshrrev_b32 v33, 4, v27"); A("v_and_b32 v33, 1, v33"); A("v_lshlrev_b32 v33, 5, v33"); A("v_add_u32 v31, v31, v33")
    A("v_and_b32 v33, 3, v27"); A("v_lshlrev_b32 v33, 3, v33")
    A(f"s_lshl_b32 s{sT0}, s{sW}, 12")
    A(f"v_add3_u32 v{vBWQ}, v31, v33, s{sT0}")
    A("v_lshrrev_b32 v31, 1, v27"); A("v_and_b32 v32, 3, v31"); A("v_lshrrev_b32 v33, 2, v31"); A("v_and_b32 v33, 1, v33")
    A("v_lshl_add_u32 v32, v33, 3, v32")
    A("v_lshlrev_b32 v32, 13, v32")
    A("v_lshrrev_b32 v33, 5, v27"); A("v_lshlrev_b32 v33, 6, v33")
    A("v_and_b32 v34, 1, v27"); A("v_lshlrev_b32 v34, 5, v34")
    A("v_add3_u32 v32, v32, v33, v34")
    A("v_lshrrev_b32 v33, 4, v27"); A("v_and_b32 v33, 1, v33"); A("v_lshlrev_b32 v33, 4, v33")
    A(f"s_lshl_b32 s{sT0}, s{sW}, 7")
    A(f"v_add3_u32 v32, v32, v33, s{sT0}")
    for j in range(4): A(f"v_add_u32 v{vOFFW16+j}, {(16*(j>>1)+4*(j&1))*8192 - j*1024}, v32")
    A("v_and_b32 v31, 15, v27"); A("v_lshrrev_b32 v32, 1, v31"); A("v_lshlrev_b32 v31, 7, v31"); A("v_lshrrev_b32 v33, 4, v27")
    for s2 in range(2):
        A(f"v_add_u32 v34, {4*s2}, v33"); A("v_xor_b32 v34, v34, v32"); A("v_lshlrev_b32 v34, 4, v34")
        A(f"v_add_u32 v{vBC16+s2}, v31, v34")
    A("v_lshrrev_b32 v31, 5, v27"); A("v_lshlrev_b32 v31, 11, v31")
    A("v_lshrrev_b32 v32, 4, v27"); A("v_and_b32 v32, 1, v32"); A("v_lshlrev_b32 v32, 7, v32")
    A("v_lshrrev_b32 v33, 2, v27"); A("v_and_b32 v33, 3, v33"); A("v_lshlrev_b32 v33, 5, v33")
    A("v_add3_u32 v31, v31, v32, v33")
    A("v_and_b32 v32, 3, v27"); A("v_lshlrev_b32 v32, 3, v32")
    A(f"s_lshl_b32 s{sT0}, s{sWN}, 13")
    A(f"v_add3_u32 v{vBW16}, v31, v32, s{sT0}")
    A("v_lshrrev_b32 v31, 3, v27"); A("v_and_b32 v31, 1, v31"); A("v_lshlrev_b32 v31, 8, v31")
    A("v_and_b32 v32, 7, v27"); A("v_lshlrev_b32 v32, 4, v32")
    A("v_lshrrev_b32 v33, 4, v27"); A("v_lshlrev_b32 v33, 9, v33")
    A(f"v_add3_u32 v{vST16}, v31, v32, v33")
    A(f"v_mov_b32 v{vZ}, 0")
    A("s_waitcnt lgkmcnt(0)")
    if PROF and "p1" in PNAMES:
        A("s_mov_b64 s[94:95], s[98:99]"); A("s_mov_b64 s[96:97], s[100:101]")
    pst(A, "p1")
    srd(A, SRD_X, "s64", "s65", 1835008)
    srd(A, SRD_C, "s66", "s67", 4194304)
    srd(A, SRD_WQ, "s68", "s69", 3670016)
    A(f"s_cmp_eq_u32 s{sISV}, 0")
    A(f"s_cselect_b32 s{sT0}, s70, s72"); A(f"s_cselect_b32 s{sT1}, s71, s73")
    srd(A, SRD_W, f"s{sT0}", f"s{sT1}", 8388608)
    srd(A, SRD_DBG, "s76", "s77", 256)
    srd(A, SRD_WS, "s78", "s79", WS_BYTES)
    A("s_cmp_lt_u32 s2, 224")
    A(f"s_cselect_b32 s{sT2}, 1835008, 0"); A(f"s_cselect_b32 s{sT3}, 3584, 0"); A(f"s_cselect_b32 s3, {WS_BYTES}, 0")
    srd(A, SRD_BSK, "s82", "s83", f"s{sT3}")
    srd(A, SRD_BV, "s80", "s81", f"s{sT2}")
    srd(A, SRD_BK, "s46", "s47", f"s{sT2}")
    srd(A, SRD_BQ, "s44", "s45", f"s{sT2}")
    srd(A, SRD_BWS, "s78", "s79", "s3")
    A(f"s_lshl_b32 s{sW4096}, s{sW}, 12")
    A(f"s_lshl_b32 s{sSOFFC}, s{sMT}, 19")
    A(f"s_lshl_b32 s{sSOFFW}, s{sHD}, 9")
    A(f"s_lshl_b32 s{sOUT}, s{sHD}, 20")
    A(f"s_lshl_b32 s{sT0}, s{sMT}, 17"); A(f"s_add_u32 s{sOUT}, s{sOUT}, s{sT0}")
    A(f"s_lshl_b32 s{sT0}, s{sWM}, 16"); A(f"s_add_u32 s{sOUT}, s{sOUT}, s{sT0}")
    A(f"s_add_u32 s{sT1}, s{sISV}, 13")
    A(f"s_lshl_b32 s{sT0}, s{sWN}, s{sT1}"); A(f"s_add_u32 s{sOUT}, s{sOUT}, s{sT0}")
    A(f"s_lshl_b32 s{sT0}, {WS_K}, s{sISV}")
    A(f"s_add_u32 s{sOUT}, s{sOUT}, s{sT0}")
    A(f"s_mov_b32 s{sOWLO}, 0")
    A(f"s_lshl_b32 s{sOC}, s{sWM}, 14"); A(f"s_add_u32 s{sOC}, s{sOC}, {UNIT}")
    A(f"s_mov_b32 s{sOWHI}, {3*UNIT}")
    A(f"s_mov_b32 s{sDST}, 0")
    A(f"s_and_b32 s{sXCC}, s{sXCC}, 7")
    A(f"s_lshl_b32 s{sFL}, s{sHD}, 7"); A(f"s_add_u32 s{sFL}, s{sFL}, {WS_FLAG}")
    A(f"s_lshr_b32 s{sT1}, s{sLI}, 1"); A(f"s_lshl_b32 s{sPOS}, s{sHD}, 4"); A(f"s_add_u32 s{sPOS}, s{sPOS}, s{sT1}")
    A(f"v_lshlrev_b32 v{vGM+1}, 2, v27")
    A(f"s_sub_u32 s{sT0}, 15, s{sI}"); A(f"s_cmp_eq_u32 s{sTYPE}, 0"); A(f"s_cselect_b32 s{sT0}, s{sT0}, s{sI}")
    A(f"s_lshl_b32 s{sT0}, s{sT0}, 7"); A(f"s_lshl_b32 s{sT1}, s{sHD}, 2"); A(f"s_add_u32 s{sFL2}, s{sT0}, s{sT1}")
    A(f"s_add_u32 s{sFL2}, s{sFL2}, {WS_FLAG2}")
    A(f"s_cmp_lg_u32 s{sW}, 0"); A("s_cbranch_scc1 F_NOZERO")
    A("s_mov_b64 exec, 1")
    A(f"buffer_store_dword v{vZ}, v{vZ}, {sr(SRD_WS,4)}, s{sFL2} offen sc1")
    for w in (KVWORD(), PWORD(), QWORD()):
        for x in w: A(x)
        A(f"s_add_u32 s{sT1}, s{sT1}, s{sFL}")
        A(f"buffer_store_dword v{vZ}, v{vZ}, {sr(SRD_WS,4)}, s{sT1} offen sc1")
    A("s_mov_b64 exec, -1")
    A.label("F_NOZERO")
    dW = lambda: dma_unit(SRD_W, vOFFW16, sSOFFW, 262144) + [f"s_and_b32 s{sSOFFW}, s{sSOFFW}, 0x7fffff"]
    dC0 = lambda: dma_unit(SRD_C, vOFFC, sSOFFC, 262144)
    dC1 = lambda: dma_unit(SRD_C, vOFFC, sSOFFC, -(262144-128)) + [f"s_bitset0_b32 s{sSOFFC}, 11"]
    if os.environ.get("KVROT", "1") == "1":
        A(f"s_lshl_b32 s{sT0}, s{sX}, 8"); A(f"s_add_u32 s{sSOFFC}, s{sSOFFC}, s{sT0}")
        A(f"s_lshl_b32 s{sT0}, s{sX}, 20"); A(f"s_add_u32 s{sSOFFW}, s{sSOFFW}, s{sT0}")
    NPRO = int(os.environ.get("NPRO", "6"))
    kvseq = lambda q: [dW, dC0, dC1, dW][q % 4]()
    def tw():
        if not WLEAD: return []
        return [f"buffer_load_dword v{vPFD}, v{vPFW}, {sr(SRD_W,4)}, s{sPF2} offen",
                f"s_add_u32 s{sPF2}, s{sPF2}, 0x80000", f"s_and_b32 s{sPF2}, s{sPF2}, 0x7fffff"]
    for q in range(NPRO): flat(A, kvseq(q))
    pst(A, "p2")
    A(f"s_sub_u32 s{sT0}, 15, s{sI}")
    A(f"s_cmp_eq_u32 s{sTYPE}, 0"); A(f"s_cselect_b32 s{sT0}, s{sT0}, s{sI}")
    A(f"s_mul_i32 s{sXB}, s{sT0}, {128*896}")
    A(f"s_lshl_b32 s{sWQB}, s{sHD}, 9")
    A(f"s_cmp_eq_u32 s{sX}, 7"); A(f"s_cselect_b32 s{sQPOS}, 3, s{sX}")
    A(f"s_lshl_b32 s{sT3}, s{sQPOS}, 7"); A(f"s_add_u32 s{sSOFFX}, s{sXB}, s{sT3}")
    A(f"s_lshl_b32 s{sT3}, s{sQPOS}, 19"); A(f"s_add_u32 s{sSOFFWQ}, s{sWQB}, s{sT3}")
    A(f"s_mul_hi_u32 s{sT4}, s2, 0x24924925")
    A(f"s_mul_i32 s{sT5}, s{sT4}, 7"); A(f"s_sub_u32 s{sT5}, s2, s{sT5}")
    A(f"s_lshl_b32 s{sT4}, s{sT4}, 6"); A(f"s_lshl_b32 s{sT5}, s{sT5}, 6")
    B1L, B1C = k0.b1_body(vB1, SRD_BQ, SRD_BK, SRD_BV, SRD_BSK, SRD_BWS, sT4, sT5, sBT)
    B1A = [x for x in B1L if not x.startswith("buffer_")]
    B1M = [x for x in B1L if x.startswith("buffer_")]
    for x in B1A: A(x)
    A("s_mov_b64 s[26:27], s[96:97]"); A("s_mov_b64 s[78:79], s[98:99]")
    code_prefetch(A, "A", "F_K", "F_ATT", 26, 27)
    if WLEAD:
        A(f"s_lshl_b32 s{sT0}, s{sMT}, 2"); A(f"s_add_u32 s{sT0}, s{sT0}, s{sW}"); A(f"s_lshl_b32 s{sT0}, s{sT0}, 14")
        A("v_and_b32 v28, 63, v0")
        A("v_lshrrev_b32 v29, 2, v28"); A("v_and_b32 v29, 1, v29"); A("v_lshlrev_b32 v29, 13, v29")
        A("v_and_b32 v30, 3, v28"); A("v_lshlrev_b32 v30, 7, v30")
        A(f"v_add3_u32 v{vPFW}, v29, v30, s{sT0}")
        A("v_lshrrev_b32 v29, 3, v28"); A(f"v_min_u32 v29, {WLEAD-3}, v29"); A("v_add_u32 v29, 2, v29")
        A(f"s_lshl_b32 s{sT1}, s{sX}, 1"); A(f"v_add_u32 v29, s{sT1}, v29"); A("v_and_b32 v29, 15, v29"); A("v_lshlrev_b32 v29, 19, v29")
        A(f"v_add_u32 v29, v29, v{vPFW}")
        A(f"s_lshl_b32 s{sT0}, s{sHD}, 9")
        A(f"buffer_load_dword v{vPFD}, v29, {sr(SRD_W,4)}, s{sT0} offen")
        A(f"s_add_u32 s{sT1}, s{sT1}, {WLEAD}"); A(f"s_and_b32 s{sT1}, s{sT1}, 15"); A(f"s_lshl_b32 s{sT1}, s{sT1}, 19")
        A(f"s_add_u32 s{sPF2}, s{sT0}, s{sT1}")
    TLBW = os.environ.get("TLBW", "0") == "1"
    if TLBW:
        A(f"s_lshl_b32 s{sT0}, s{sLI}, 2"); A(f"s_add_u32 s{sT0}, s{sT0}, s{sW}")
        A(f"v_lshlrev_b32 v28, 19, v{vGM+1}")
        A(f"s_cmp_lg_u32 s{sT0}, 127"); A("s_cbranch_scc1 F_TL1")
        A(f"buffer_load_dword v29, v28, {sr(SRD_WS,4)}, 0 offen")
        A.label("F_TL1")
        A(f"s_cmp_lg_u32 s{sT0}, 123"); A("s_cbranch_scc1 F_TL2")
        A(f"v_lshlrev_b32 v28, 18, v{vGM+1}")
        A(f"buffer_load_dword v29, v28, {sr(SRD_X,4)}, 0 offen")
        A(f"buffer_load_dword v29, v28, {sr(SRD_WQ,4)}, 0 offen")
        A("s_mov_b64 exec, 3")
        A("global_load_dword v29, v28, s[26:27]")
        A("s_mov_b64 exec, -1")
        A.label("F_TL2")
    pst(A, "p3")
    for s in range(2): A(f"v_add_u32 v{vCA+s}, s{sOC}, v{vBC16+s}")
    A(f"v_add_u32 v{vWLO}, s{sOWLO}, v{vBW16}"); A(f"v_add_u32 v{vWHI}, s{sOWHI}, v{vBW16}")
    A(f"s_waitcnt vmcnt({4*(NPRO-3) + (1 if CODEPF else 0) + (1 if WLEAD else 0)})"); A("s_barrier")
    pstamp(A, 1)
    for x in kv_reads(0, vCA+0, vWLO): A(x)
    A(f"s_mov_b32 s{sCNT}, 0")
    A(f"s_and_b32 s{sFAST}, s{sLI}, 3"); A(f"s_add_u32 s{sFAST}, s{sFAST}, 1"); A(f"s_lshl_b32 s{sT0}, s{sW}, 6"); A(f"s_add_u32 s{sFAST}, s{sFAST}, s{sT0}")
    if KPT:
        A(f"s_and_b32 s{sDX}, s{sW}, 1"); A(f"s_add_u32 s{sDX}, s{sDX}, 4")
        A(f"s_lshl_b32 s{sDW}, s{sHD}, 20"); A(f"s_lshl_b32 s{sT0}, s{sMT}, 17"); A(f"s_add_u32 s{sDW}, s{sDW}, s{sT0}")
        A(f"s_lshl_b32 s{sT0}, s{sW}, 15"); A(f"s_add_u32 s{sDW}, s{sDW}, s{sT0}")
        A(f"s_lshl_b32 s{sT0}, {WS_K}, s{sISV}"); A(f"s_add_u32 s{sDW}, s{sDW}, s{sT0}")
    dWQ = lambda: dma_unit(SRD_WQ, vOFFW, sSOFFWQ, 262144)
    dX = lambda: dma_unit(SRD_X, vOFFX, sSOFFX, 128)
    def qseq(seq):
        k = (seq - 64) % 3
        if k == 0: return dWQ()
        if k == 1: return dX()
        g = dWQ() + [[f"s_add_u32 s{sQPOS}, s{sQPOS}, 1", f"s_cmp_eq_u32 s{sQPOS}, 7",
                      f"s_cselect_b32 s{sSOFFX}, s{sXB}, s{sSOFFX}", f"s_cselect_b32 s{sSOFFWQ}, s{sWQB}, s{sSOFFWQ}",
                      f"s_cselect_b32 s{sQPOS}, 0, s{sQPOS}"]]
        return g
    A(f"s_cmp_lg_u32 s{sISV}, 0"); A("s_cbranch_scc1 F_V")
    B1S = [([x[0], x[1] + " sc1"] if isinstance(x, list) else x) for x in B1C]
    for isv in (0, 1):
        tag = "V" if isv else "K"
        A.label(f"F_{tag}")
        R = list(range(NPRO, 13)); n0 = min((len(R) + 1) // 2 + 1, 11 - NPRO)
        b0 = sum((kvseq(q) for q in R[:n0]), []); b1 = sum((kvseq(q) for q in R[n0:]), [])
        kv_stage(A, isv, [b0, [], b1, tw()], kv_reads(0, vCA+0, vWLO), wa=4*(NPRO-4), wb=4*(R[n0-1]-6), fresh=True, ex1=B1M)
        h5 = len(B1S) // 5
        kv_stage(A, isv, [dC0(), dC1(), dW(), dW() + tw()], kv_reads(0, vCA+0, vWLO), ex1=B1S[:h5], wa=20+len(B1M), wb=8)
        kv_stage(A, isv, [dC0(), dC1(), dW(), dW() + tw()], kv_reads(0, vCA+0, vWLO), B1S[h5:3*h5])
        kv_stage(A, isv, [dC0(), dC1(), dW(), dW() + tw()], kv_reads(0, vCA+0, vWLO), B1S[3*h5:])
        A.label(f"F_{tag}_LOOP")
        kv_stage(A, isv, [dC0(), dC1(), dW(), dW() + tw()], kv_reads(0, vCA+0, vWLO))
        A(f"s_cmp_eq_u32 s{sCNT}, s{sFAST}"); A(f"s_cbranch_scc1 F_REG_{tag}"); A.label(f"F_REG_RET_{tag}")
        if WQPF:
            A(f"s_cmp_eq_u32 s{sCNT}, {WQPF}"); A(f"s_cbranch_scc1 F_WQ_{tag}"); A.label(f"F_WQ_RET_{tag}")
        A(f"s_add_u32 s{sCNT}, s{sCNT}, 1"); A(f"s_cmp_lt_u32 s{sCNT}, 9"); A(f"s_cbranch_scc1 F_{tag}_LOOP")
        if os.environ.get("CPF2", "1") == "1": code_prefetch(A, "A2" + tag, f"F_QP_{tag}", "F_LOOP" if isv else "F_V", 26, 27)
        kv_stage(A, isv, [dC0(), dC1(), dW(), qseq(64)], kv_reads(0, vCA+0, vWLO))
        kv_stage(A, isv, [qseq(65), qseq(66), qseq(67), qseq(68)], kv_reads(0, vCA+0, vWLO))
        kv_stage(A, isv, [qseq(69), qseq(70), qseq(71), qseq(72)], q_reads(0, 0, 0))
        A.label(f"F_QP_{tag}")
        pst(A, "kvend")
        ep1, ep2 = kv_epilogue_groups(isv)
        def hook1(A, nb, tag=tag): pass
        KAB = 128 if isv else 192
        def hook2(A, nb):
            hook1(A, nb)
            if nb == 4:
                conv_scalars(A); kern_loads(A, KAB)
            if nb == 5:
                for x in reg_load(): A(x)
        ny = q_pass(A, qseq, ["s_nop 7"] + (v_compact_groups() if (isv and VDEFER) else ep1 + ep2), hook2)
        pst(A, "qend")
        A(f"s_waitcnt vmcnt({ny})")
        reg_check(A, tag, vTMP)
        pstamp(A, 2)
        xq_loads(A)
        q_exchange(A, isv)
        pst(A, "qx")
        kern_move(A, KAB)
        if VDEFER:
            if not isv: A("s_waitcnt vmcnt(0)")
        else: A(f"s_waitcnt vmcnt({0 if isv else 16})")
        A(f"s_mov_b32 s{sVOUT}, s{sOUT}")
        srd(A, SRD_VS, f"s{SRD_WS}", f"s{SRD_WS+1}", WS_BYTES if isv else 0)
        A("s_waitcnt lgkmcnt(0)"); A("s_barrier")
        if not isv and VDEFER: flag_store(A, "KV" + tag, KVWORD(), vTMP)
        q_exchange_read(A, isv)
        if isv == 0: A("s_branch F_MID")
    A.label("F_MID")
    for k in range(NV0): put(A, vstore(k))
    att_setup(A)
    A(f"s_cmp_eq_u32 s{sCR}, 99"); A("s_cbranch_scc1 F_NOCONV")
    conv(A, "X")
    A("s_branch F_ATT")
    early_go(A, "C30"); early_go(A, "C60"); early_go(A, "C90")
    A.label("F_NOCONV")
    for k in (range(NV0, 32) if VDEFER else []): put(A, vstore(k))
    A("s_nop 1")
    for r in range(128): A(f"v_accvgpr_write_b32 a{aO+r}, 0")
    A("s_waitcnt lgkmcnt(0)"); A("s_barrier")
    A.label("F_ATT")
    attention(A)
    if KPT:
        for tag in ("K", "V"):
            A.label(f"F_KPT_{tag}")
            A(f"v_lshlrev_b32 v26, 5, v{vGM+1}")
            A(f"buffer_load_dword v27, v26, {sr(SRD_WS,4)}, s{sDW} offen{PTF}")
            A(f"s_add_u32 s{sDW}, s{sDW}, 8192"); A(f"s_add_u32 s{sDX}, s{sDX}, 2")
            A(f"s_branch F_KPT_RET_{tag}")
    for tag in (("K", "V") if WQPF else ()):
        A.label(f"F_WQ_{tag}")
        A(f"s_lshl_b32 s{sT2}, s{sLI}, 2"); A(f"s_add_u32 s{sT2}, s{sT2}, s{sW}"); A(f"s_mul_i32 s{sT3}, s{sT2}, 28")
        A(f"v_lshrrev_b32 v26, 2, v{vGM+1}"); A(f"v_add_u32 v26, s{sT3}, v26")
        A("v_lshrrev_b32 v27, 3, v26"); A("v_lshlrev_b32 v27, 13, v27"); A("v_and_b32 v26, 7, v26"); A("v_lshlrev_b32 v26, 7, v26")
        A("v_add_u32 v26, v26, v27"); A(f"s_lshl_b32 s{sT3}, s{sX}, 10")
        A("s_mov_b64 exec, 0xfffffff")
        A(f"buffer_load_dword v28, v26, {sr(SRD_WQ,4)}, s{sT3} offen")
        A("s_mov_b64 exec, -1")
        if os.environ.get("XPF", "0") == "1":
            A(f"v_lshlrev_b32 v26, 5, v{vGM+1}"); A(f"s_mul_i32 s{sT3}, s{sT2}, {112*128}")
            A(f"buffer_load_dword v28, v26, {sr(SRD_X,4)}, s{sT3} offen")
            A(f"s_add_u32 s{sT3}, s{sT3}, 8192")
            A("s_mov_b32 exec_hi, 0xffff")
            A(f"buffer_load_dword v28, v26, {sr(SRD_X,4)}, s{sT3} offen")
            A("s_mov_b64 exec, -1")
        A(f"s_branch F_WQ_RET_{tag}")
    for tag in ("K", "V"):
        A.label(f"F_REG_{tag}")
        A(f"s_add_u32 s{sT1}, s{sXCC}, 1"); A(f"v_mov_b32 v{vGM}, s{sT1}")
        A("s_mov_b64 exec, 1")
        A(f"buffer_store_byte v{vGM}, v{vZ}, {sr(SRD_DBG,4)}, s{sPOS} offen sc1")
        A("s_mov_b64 exec, -1")
        A(f"s_branch F_REG_RET_{tag}")
    A.label("F_END")
    A("s_endpgm")
    d = kernel_desc(NAME, 512, 102, 256).replace(".end_amdhsa_kernel", "  .amdhsa_float_denorm_mode_32 3\n.end_amdhsa_kernel")
    return A.text(), d, f"; @launch kernel={NAME} grid=(256,1,1) block=(256,1,1) lds={LDS}"
```
